```python
import torch

def _softmax(x, axis=-1):
    return torch.softmax(x, dim=axis)
def _gelu(x):
    return torch.nn.functional.gelu(x, approximate="tanh")
def _silu(x):
    return torch.nn.functional.silu(x)
def _sigmoid(x):
    return torch.sigmoid(x)
def _layernorm(x, axis=-1, eps=1e-5):
    m = x.mean(dim=axis, keepdim=True)
    v = x.var(dim=axis, keepdim=True, unbiased=False)
    return (x - m) / torch.sqrt(v + eps)
def _scatter_add(tgt, idx, src, axis=0):
    return tgt.clone().index_add_(axis, idx, src)
def _segment_sum(src, seg, n):
    out = torch.zeros((n,) + src.shape[1:], dtype=src.dtype)
    return out.index_add_(0, seg, src)
def _pad(x, pw):
    flat = tuple(v for pair in reversed(pw) for v in pair)
    return torch.nn.functional.pad(x, flat)

kernel_name = 'interleave_layers__grouped_kv_mqa__dense_activation_gelu__prompt'

def setup_inputs():

    _w = (lambda a: (lambda t: t.to(torch.bfloat16) if t.is_floating_point() else t)(torch.as_tensor(a)))
    def _A_setup():
        B, S, D, H = 1, 2048, 512, 32
        Dh = D // H
        return {
            "x": _w((lambda *s: torch.randn(*s, dtype=torch.bfloat16) * 0.05)(B, S, D)),
            "wq": _w((lambda *s: torch.randn(*s, dtype=torch.bfloat16) * 0.05)(D, H * Dh)),
            "wk": _w((lambda *s: torch.randn(*s, dtype=torch.bfloat16) * 0.05)(D, Dh)),
            "wv": _w((lambda *s: torch.randn(*s, dtype=torch.bfloat16) * 0.05)(D, Dh)),
            "wo": _w((lambda *s: torch.randn(*s, dtype=torch.bfloat16) * 0.05)(H * Dh, D)),
        }
    _A_in = _A_setup()

    def _B_setup():
        B, S, D, F = 1, 2048, 512, 1792
        return {
            "x": _w((lambda *s: torch.randn(*s, dtype=torch.bfloat16) * 0.05)(B, S, D)),
            "w1": _w((lambda *s: torch.randn(*s, dtype=torch.bfloat16) * 0.8)(D, F) * (D ** -0.5)),
            "b1": _w((lambda *s: torch.randn(*s, dtype=torch.bfloat16) * 12.8)(F) * 0.01),
            "w2": _w((lambda *s: torch.randn(*s, dtype=torch.bfloat16) * 0.2)(F, D) * (F ** -0.5)),
            "b2": _w((lambda *s: torch.randn(*s, dtype=torch.bfloat16) * 1.6)(D) * 0.01),
        }
    _B_in = _B_setup()

    return {
        "A_x": _A_in["x"],
        "A_wq": _A_in["wq"],
        "A_wk": _A_in["wk"],
        "A_wv": _A_in["wv"],
        "A_wo": _A_in["wo"],
        "B_x": _B_in["x"],
        "B_w1": _B_in["w1"],
        "B_b1": _B_in["b1"],
        "B_w2": _B_in["w2"],
        "B_b2": _B_in["b2"],
    }

def reference(A_x, A_wq, A_wk, A_wv, A_wo, B_x, B_w1, B_b1, B_w2, B_b2):
    def _A_ref(x, wq, wk, wv, wo):
        B, S, D = x.shape
        H = 32
        Dh = D // H
        q = (lambda x, *d: x.permute(*d))((x @ wq).reshape(B, S, H, Dh), 0, 2, 1, 3)
        k = x @ wk
        v = x @ wv
        scores = torch.einsum("bhqd,bkd->bhqk", q, k) * (Dh ** -0.5)
        p = _softmax(scores, axis=-1)
        o = torch.einsum("bhqk,bkd->bhqd", p, v)
        return (lambda x, *d: x.permute(*d))(o, 0, 2, 1, 3).reshape(B, S, H * Dh) @ wo

    def _B_ref(x, w1, b1, w2, b2):
        h = torch.einsum("bsd,df->bsf", x, w1) + b1
        h = _gelu(h)
        return torch.einsum("bsf,fd->bsd", h, w2) + b2

    x = A_x
    x = x + _A_ref(_layernorm(x, axis=-1), A_wq, A_wk, A_wv, A_wo)
    x = x + _B_ref(_layernorm(x, axis=-1), B_w1, B_b1, B_w2, B_b2)
    x = x + _A_ref(_layernorm(x, axis=-1), A_wq, A_wk, A_wv, A_wo)
    x = x + _B_ref(_layernorm(x, axis=-1), B_w1, B_b1, B_w2, B_b2)
    return x
```

```python
import re

TRANS = ("v_exp_f32", "v_log_f32", "v_rcp_f32", "v_rsq_f32", "v_sqrt_f32", "v_sin_f32", "v_cos_f32")


def regs_of(tok):
    tok = tok.strip()
    if tok.startswith("-"):
        tok = tok[1:]
    tok = tok.strip("|")
    m = re.fullmatch(r"([vas])(\d+)", tok)
    if m:
        return {(m.group(1), int(m.group(2)))}
    m = re.fullmatch(r"([vas])\[(\d+):(\d+)\]", tok)
    if m:
        return {(m.group(1), i) for i in range(int(m.group(2)), int(m.group(3)) + 1)}
    if tok in ("vcc", "vcc_lo", "vcc_hi"):
        return {("s", "vcc")}
    if tok in ("exec", "exec_lo", "exec_hi"):
        return {("s", "exec")}
    if tok == "m0":
        return {("s", "m0")}
    return set()


class Ins:
    def __init__(self, text):
        self.tags = set()
        if ";@" in text:
            text, t = text.split(";@", 1)
            self.tags = set(t.split())
        text = text.split(";")[0].strip()
        self.text = text
        self.label = text[:-1] if text.endswith(":") else None
        self.op = text.split()[0] if text else ""
        self.directive = text.startswith(".") and self.label is None
        rest = text[len(self.op):]
        ops = [x.strip() for x in rest.split(",")] if rest.strip() else []
        cl = []
        for x in ops:
            cl.append(x.split()[0] if x else x)
        self.ops = cl
        op = self.op
        self.mfma = op.startswith("v_mfma") or op.startswith("v_smfmac")
        self.valu = op.startswith("v_") and not self.mfma
        self.vmem = op.startswith("buffer_") or op.startswith("global_")
        self.ds = op.startswith("ds_")
        self.salu = op.startswith("s_")
        self.trans = op.replace("_e32", "").replace("_e64", "") in TRANS
        self.dot = op.startswith("v_dot")
        self.dpp = "_dpp" in op
        self.perml = op.startswith("v_permlane")
        self.rl = op.startswith("v_readfirstlane") or op.startswith("v_readlane")
        self.ldsdma = self.vmem and re.search(r"\blds\b", text) is not None
        self.dst = set(); self.src = set(); self.srcC = set(); self.srcAB = set()
        R = [regs_of(x) for x in cl]
        if self.mfma:
            self.passes = 4 if "16x16x32" in op else 8
            self.dst = R[0]
            if op.startswith("v_smfmac"):
                self.srcC = R[0]; self.srcAB = R[1] | R[2] | R[3]
            else:
                self.srcC = R[3]; self.srcAB = R[1] | R[2]
            self.src = self.srcC | self.srcAB
        elif self.valu:
            self.dst = R[0]
            for r in R[1:]:
                self.src |= r
            if self.perml:
                self.dst = R[0] | R[1]; self.src = R[0] | R[1]
            if op.startswith("v_dot2c") or op.startswith("v_fmac") or op.startswith("v_writelane"):
                self.src |= R[0]
            if self.dpp:
                self.src |= R[0]
            if "_co_" in op:
                self.dst |= R[1]
            if self.dot:
                self.dotC = R[0] if op.startswith("v_dot2c") else R[3]
                self.dotAB = R[1] | R[2]
        elif self.vmem:
            if ("load" in op) and not self.ldsdma:
                self.dst = R[0]
                for r in R[1:]:
                    self.src |= r
            else:
                for r in R:
                    self.src |= r
            self.wide = ("store" in op) and (op.endswith("x4") or op.endswith("x3"))
            if self.wide:
                self.sdata = R[0] if op.startswith("buffer") else R[1]
        elif self.ds:
            if "read" in op:
                self.dst = R[0]
                for r in R[1:]:
                    self.src |= r
            else:
                for r in R:
                    self.src |= r
        elif self.salu and R:
            if not (op.startswith("s_cmp") or op.startswith("s_cbranch") or op.startswith("s_bitcmp")):
                self.dst = R[0]
            for r in R[1:]:
                self.src |= r

    def states(self):
        if self.label or self.directive or not self.op:
            return 0
        if self.op == "s_nop":
            return int(self.ops[0]) + 1
        return 1


def isv(s):
    return {r for r in s if r[0] in "va"}


def iss(s):
    return {r for r in s if r[0] == "s"}


def need(p, c):
    n = 0
    if p.mfma:
        big = 8 if p.passes == 4 else 12
        if c.mfma:
            if p.dst & c.srcAB:
                n = max(n, big)
            if p.dst & c.srcC:
                if not (p.dst == c.srcC and p.passes == c.passes):
                    n = max(n, big - 2)
            elif p.dst & c.dst and p.passes != c.passes:
                n = max(n, big)
        elif c.valu or c.vmem or c.ds:
            if p.dst & (c.src | c.dst):
                n = max(n, big)
            if c.valu and (p.srcC & c.dst):
                n = max(n, 3 if p.passes == 4 else 7)
    elif p.valu:
        vd = isv(p.dst); sd = iss(p.dst)
        if c.mfma and (vd & c.src):
            n = max(n, 2)
        if c.mfma and p.op.startswith("v_pk_") and "op_sel" in p.text:
            n = max(n, 2)
        if c.mfma and (("s", "exec") in sd):
            n = max(n, 4)
        if p.dot and (vd & (c.src | c.dst)):
            if c.op == p.op and not (vd & c.dotAB):
                pass
            else:
                n = max(n, 3)
        if p.trans and (c.valu or c.mfma) and not c.trans and (vd & c.src):
            n = max(n, 1)
        if c.valu and (c.dpp or c.perml) and (vd & c.src):
            n = max(n, 2)
        if c.valu and c.rl and (vd & c.src):
            n = max(n, 1)
        if sd:
            if c.vmem and (sd & c.src):
                n = max(n, 5)
            if c.valu and (sd & c.src):
                n = max(n, 4 if (c.op.startswith("v_writelane") or c.op.startswith("v_readlane")) else 2)
    elif p.vmem:
        if p.wide and (p.sdata & c.dst):
            n = max(n, 2)
    elif p.salu:
        if ("s", "m0") in p.dst and c.ldsdma:
            n = max(n, 1)
    return n


class Prog:
    def __init__(self):
        self.L = []
        self.ool = []
        self.nlab = 0

    def __call__(self, *lines):
        for t in lines:
            if isinstance(t, (list, tuple)):
                self(*t)
            else:
                for x in t.split("\n"):
                    if x.strip():
                        self.L.append(x.strip())

    def lab(self, base="L"):
        self.nlab += 1
        return f"{base}_{self.nlab}"

    def out_of_line(self, *lines):
        for t in lines:
            if isinstance(t, (list, tuple)):
                self.out_of_line(*t)
            else:
                for x in t.split("\n"):
                    if x.strip():
                        self.ool.append(x.strip())

    def flush_ool(self):
        self.L += self.ool
        self.ool = []

    def resolve_waits(self, I):
        out = []
        for i, x in enumerate(I):
            if x.op != "WAIT":
                out.append(x); continue
            parts = []
            for a in x.text.split()[1:]:
                k, tag = a.split("=")
                cap = 63 if k == "vm" else 15
                if tag.isdigit():
                    n = int(tag)
                else:
                    n = 0; found = False
                    for y in reversed(I[:i]):
                        cnt = y.vmem if k == "vm" else y.ds
                        if not cnt:
                            continue
                        if tag in y.tags:
                            found = True; break
                        if "opt" not in y.tags:
                            n += 1
                    assert found, f"tag {tag} not found"
                n = min(n, cap)
                parts.append(("vmcnt(%d)" if k == "vm" else "lgkmcnt(%d)") % n)
            out.append(Ins("s_waitcnt " + " ".join(parts)))
        return out

    def pad(self, I):
        total = 0
        while True:
            br = {}
            for i, x in enumerate(I):
                if x.op.startswith("s_cbranch") or x.op == "s_branch":
                    br.setdefault(x.ops[0], []).append(i)
            ins = []
            lastfix = -100
            for i, c in enumerate(I):
                if not (c.valu or c.mfma or c.vmem or c.ds):
                    continue
                worst = 0
                stack = [(i, 0)]
                seen = set()
                while stack:
                    j, d = stack.pop()
                    if (j, d) in seen or d >= 12:
                        continue
                    seen.add((j, d))
                    preds = []
                    if j > 0 and I[j - 1].op not in ("s_branch", "s_endpgm"):
                        preds.append(j - 1)
                    if I[j].label:
                        preds += br.get(I[j].label, [])
                    for k in preds:
                        p = I[k]
                        if p.states():
                            worst = max(worst, need(p, c) - d)
                        stack.append((k, d + p.states()))
                if worst > 0 and i - lastfix > 16:
                    ins.append((i, worst)); lastfix = i
            if not ins:
                break
            for i, n in reversed(ins):
                I.insert(i, Ins(f"s_nop {n-1}"))
                I[i].auto = True
                total += n
        self.padded = total
        return I

    def finish(self):
        I = [Ins(x) for x in self.L]
        I = self.resolve_waits(I)
        I = self.pad(I)
        self.I = I
        return "\n".join((x.text if x.label else "    " + x.text) for x in I) + "\n"


def vr(b, n=1, k="v"):
    return f"{k}{b}" if n == 1 else f"{k}[{b}:{b+n-1}]"


def ar(b, n=1):
    return vr(b, n, "a")


def sr(b, n=1):
    return vr(b, n, "s")
```

```python
import sys, struct, os
sys.path.insert(0, os.path.dirname(os.path.abspath(__file__)))
from asmlib import *

NAME = "interleave_layers__grouped_kv_mqa__dense_activation_gelu__prompt"
OPT = dict(debug=0, force_safe=0, force_slow=0, s2_load=1, s2_chk=5, pf_load=9, pf_chk=13)

def f2u(x):
    return struct.unpack("<I", struct.pack("<f", x))[0]

KVF0 = 0x1000; PREPF = 0x2000; GFL0 = 0x4000
CS1 = 0x10000; KV0 = 0x40000; WOF = 0x80000; WQF = 0x100000; W1F = 0x200000; W2F = 0x400000
X2 = 0x600000; GRP0 = 0x800000; DBG = 0x3000000
G_O = 0; G_X1 = 0x40000; G_ST = 0x80000; G_H = 0x100000
LSTEP = 8
F_O = 0; F_X1 = 512; F_H = 1024; F_X2 = 1536
RING = 114688; XT = RING; SLOT = 16512; TS = 2064
MISC = 147968
L_MU = MISC; L_CSQ = MISC + 256; L_TB = MISC + 1024; L_KVP = MISC + 2048; L_CKP = MISC + 6144
LDS_BYTES = 163840
WS = "s[4:7]"; XIN = "s[8:11]"; OUT = "s[12:15]"; SA = "s[16:19]"; SB = "s[20:23]"; SC = "s[24:27]"
sF, sBUD, sLAY, sSAFE = "s28", "s29", "s30", "s31"
sG, sC, sW, sRB, sCQ, sGR, sFL, sKV, sKVF, sXCC, sONE = [f"s{i}" for i in range(58, 69)]
T = [f"s{i}" for i in range(70, 80)]
sA1, sA2a, sA2b, sAO, sCH, sM0K, sM0W = [f"s{i}" for i in range(80, 87)]
sPD = "s87"
sGC = "s[88:89]"
sST = "s90"; sHI = "s91"
sW0 = "s[94:95]"
vL, vIDX, vK, vVlo, vVhi, vF, vXB = "v1", "v2", "v3", "v4", "v5", "v6", "v7"
CK = 8; RES = 12; Q = 20; R = 128
AKV = 224; AB2 = 240


def gen(**kw):
    o = dict(OPT); o.update(kw)
    P = Prog(); E = P

    def stamp():
        if not o["debug"]:
            return
        E("s_memtime s[92:93]", "s_waitcnt lgkmcnt(0)", f"s_mov_b32 m0, {sST}", "v_writelane_b32 v0, s92, m0",
          f"s_add_u32 {sST}, {sST}, 1")

    def poll(vaddr, soff, imm=0, vt="v120", rng=False, inv=True):
        lp = P.lab("POLL"); dn = P.lab("PDONE"); fl = P.lab("PFAIL")
        E(f"{lp}:", f"buffer_load_dword {vt}, {vaddr}, {WS}, {soff} offen offset:{imm} sc1",
          f"s_sub_u32 {sBUD}, {sBUD}, 1", f"s_cbranch_scc1 {fl}", "s_waitcnt vmcnt(0)")
        if rng:
            E(f"v_sub_u32 {vt}, {vt}, {vF}", f"v_cmp_lt_u32 vcc, 15, {vt}")
        else:
            E(f"v_cmp_ne_u32 vcc, {vt}, {vF}")
        E(f"s_cbranch_vccnz {lp}", f"{dn}:")
        P.out_of_line(f"{fl}:", f"s_mov_b32 {sBUD}, 0", "s_waitcnt vmcnt(0)", f"s_branch {dn}")
        if inv:
            a = P.lab("INV"); b = P.lab("INVD")
            E(f"s_cmp_lg_u32 {sSAFE}, 0", f"s_cbranch_scc1 {a}", f"{b}:")
            P.out_of_line(f"{a}:", "buffer_inv sc1", "s_waitcnt vmcnt(0)", f"s_branch {b}")

    def publish(soff, imm):
        a = P.lab("PUBS"); b = P.lab("PUBD")
        E(f"s_cmp_lg_u32 {sSAFE}, 0", "s_mov_b64 exec, 1", "s_waitcnt vmcnt(0)", f"s_cbranch_scc1 {a}",
          f"buffer_store_dword {vF}, off, {WS}, {soff} offset:{imm}", f"{b}:", "s_mov_b64 exec, -1")
        P.out_of_line(f"{a}:", "buffer_wbl2 sc1", "s_waitcnt vmcnt(0)",
                      f"buffer_store_dword {vF}, off, {WS}, {soff} offset:{imm} sc1", f"s_branch {b}")

    def srd(base, lo, size):
        E(f"s_mov_b32 s{base}, s{lo}", f"s_mov_b32 s{base+1}, s{lo+1}", f"s_mov_b32 s{base+2}, {size}",
          f"s_mov_b32 s{base+3}, 0x20000")

    def x_dma(SRD, sc):
        for i in range(8):
            if i == 4:
                E(f"s_add_u32 {T[0]}, {T[0]}, 4096")
            E(f"s_add_u32 m0, {T[1]}, {(i>>2)*4160 + (i&3)*16}", "s_nop 0",
              f"buffer_load_dwordx4 {vL}, {SRD}, {T[0]} offen offset:{(i&3)*1024}{sc} lds ;@x")

    def x_dma_setup():
        E(f"s_lshl_b32 {T[0]}, {sG}, 3", f"s_add_u32 {T[0]}, {T[0]}, {sRB}", f"s_lshl2_add_u32 {T[0]}, {T[0]}, {sW}",
          f"s_lshl_b32 {T[0]}, {T[0]}, 13",
          f"s_mul_i32 {T[1]}, {sW}, 8320", f"s_add_u32 {T[1]}, {T[1]}, {XT}")

    E("s_cmp_ge_u32 s2, 256", "s_cbranch_scc1 KEXIT")
    E("s_load_dwordx16 s[32:47], s[0:1], 0", "s_load_dwordx8 s[48:55], s[0:1], 64", "s_load_dwordx2 s[56:57], s[0:1], 96")
    E("s_getpc_b64 s[70:71]", "PCREF:")
    E("v_lshrrev_b32 v2, 6, v0", "v_lshlrev_b32 v3, 7, v0", f"v_readfirstlane_b32 {sW}, v2",
      "s_mov_b32 s72, KEND-PCREF-4")
    for i in range(2):
        E(f"v_add_u32 v4, {i*32768}, v3", "v_min_u32 v4, s72, v4", "v_mov_b32 v5, s71",
          "v_add_co_u32 v4, vcc, s70, v4", "v_addc_co_u32 v5, vcc, 0, v5, vcc",
          f"global_load_dword v{254+i}, v[4:5], off")
    E("v_and_b32 v1, 63, v0", "v_lshlrev_b32 v1, 4, v1")
    if o["debug"]:
        E("v_mov_b32 v0, 0", f"s_mov_b32 {sST}, 2", "s_memrealtime s[92:93]", "s_waitcnt lgkmcnt(0)", "v_writelane_b32 v0, s92, 0")
        stamp()
    E(f"s_and_b32 {sG}, s2, 7", f"s_lshr_b32 {sC}, s2, 3", f"s_lshr_b32 {sRB}, s2, 5", f"s_and_b32 {sCQ}, {sC}, 3")
    x_dma_setup()
    E(f"s_mul_i32 {T[2]}, {sW}, 28672")
    E(f"s_lshl_b32 {T[3]}, {sW}, 12")
    E("v_lshrrev_b32 v32, 6, v1", "v_lshlrev_b32 v32, 10, v32", "v_and_or_b32 v32, v1, 48, v32")
    E("s_waitcnt lgkmcnt(0)")
    E(f"s_load_dword {sF}, s[56:57], 0")
    srd(8, 32, 0x200000)
    x_dma(XIN, "")
    E(f"s_bitcmp1_b32 {sCQ}, 0", "s_cselect_b32 s20, s38, s36", "s_cselect_b32 s21, s39, s37",
      "s_mov_b32 s22, 16384", "s_mov_b32 s23, 0x20000", f"s_mov_b32 m0, {T[2]}")
    srd(16, 34, 0x80000)
    for i in range(4):
        E(f"buffer_load_dwordx4 {vL}, {SB}, {T[3]} offen offset:{i*1024} lds ;@wkv")
    E("v_lshrrev_b32 v35, 9, v1", "v_lshlrev_b32 v33, 9, v35",
      "v_bfe_u32 v35, v1, 6, 2", "v_lshl_add_u32 v33, v35, 6, v33",
      "v_bfe_u32 v35, v1, 8, 1", "v_lshl_add_u32 v33, v35, 5, v33",
      "v_bfe_u32 v35, v1, 4, 1", "v_lshl_add_u32 v33, v35, 4, v33",
      "v_bfe_u32 v35, v1, 5, 1", "v_lshl_add_u32 v33, v35, 3, v33",
      f"v_add_u32 v33, {T[2]}, v33",
      "v_and_b32 v34, 0x300, v1", "v_bfe_u32 v35, v1, 4, 4", "v_lshl_add_u32 v34, v35, 3, v34",
      f"v_add_u32 v34, {T[2]}, v34")
    E("s_cmp_lt_u32 s2, 112", "s_cbranch_scc1 PJ1")
    E("s_cmp_lt_u32 s2, 224", "s_cselect_b32 s24, s48, s40", "s_cselect_b32 s25, s49, s41",
      "s_cselect_b32 s26, 0x1c0000, s18", f"s_cselect_b32 {T[7]}, 0x70, 32", f"s_cselect_b32 {T[8]}, 0, 0x70",
      f"s_cselect_b32 {sPD}, {W2F - WOF}, 0", f"s_add_u32 {sPD}, {sPD}, {WOF}",
      f"s_sub_u32 {T[8]}, s2, {T[8]}", f"s_sub_u32 {T[8]}, {T[8]}, 0x70",
      f"s_and_b32 {T[9]}, {T[8]}, 7", f"s_lshl_b32 {T[9]}, {T[9]}, 1", f"s_and_b32 {T[4]}, {sW}, 1",
      f"s_add_u32 {T[9]}, {T[9]}, {T[4]}",
      f"s_lshr_b32 {T[8]}, {T[8]}, 3", f"s_lshl_b32 {T[8]}, {T[8]}, 1", f"s_lshr_b32 {T[4]}, {sW}, 1",
      f"s_add_u32 {T[8]}, {T[8]}, {T[4]}",
      f"s_lshl_b32 {T[4]}, {T[8]}, 16", f"s_lshl_b32 {T[5]}, {T[9]}, 6", f"s_add_u32 {T[4]}, {T[4]}, {T[5]}",
      f"s_mul_i32 {T[9]}, {T[9]}, {T[7]}", f"s_lshl2_add_u32 {T[9]}, {T[8]}, {T[9]}", f"s_lshl_b32 {T[9]}, {T[9]}, 10",
      f"s_add_u32 {sPD}, {sPD}, {T[9]}", f"s_mov_b32 {T[5]}, 16384", f"s_mov_b32 {T[6]}, 0x20000000",
      "v_mov_b32 v36, v32", "v_mov_b32 v28, v33", "v_add_u32 v29, 256, v33", "s_branch PJD")
    E("PJ1:", "s_mov_b32 s24, s44", "s_mov_b32 s25, s45", "s_mov_b32 s26, 0x1c0000",
      f"s_and_b32 {T[8]}, s2, 3", f"s_and_b32 {T[9]}, s2, 0xfc", f"s_add_u32 {T[9]}, {T[9]}, {sW}",
      f"s_mul_i32 {T[4]}, {T[8]}, {128*3584}", f"s_lshl_b32 {T[5]}, {T[9]}, 5", f"s_add_u32 {T[4]}, {T[4]}, {T[5]}",
      f"s_mul_i32 {T[6]}, {T[8]}, 7168", f"s_lshl1_add_u32 {T[6]}, {T[5]}, {T[6]}", f"s_add_u32 {T[6]}, {T[6]}, {CS1}",
      f"s_lshl2_add_u32 {T[9]}, {T[9]}, {T[8]}", f"s_lshl_b32 {T[9]}, {T[9]}, 12", f"s_add_u32 {sPD}, {T[9]}, {W1F}",
      f"s_mov_b32 {T[5]}, {32*3584}",
      "v_lshrrev_b32 v36, 5, v1", "v_mul_u32_u24 v36, 3584, v36", "v_and_or_b32 v36, v1, 16, v36",
      "v_mov_b32 v28, v34", "v_add_u32 v29, 128, v34")
    E("PJD:", "s_mov_b32 s27, 0x20000")
    for i in range(4):
        E(f"s_add_u32 m0, {T[2]}, {(4+i)*1024}", "s_nop 0",
          f"buffer_load_dwordx4 v36, {SC}, {T[4]} offen lds ;@prep", f"s_add_u32 {T[4]}, {T[4]}, {T[5]}")
    E(f"s_lshl2_add_u32 {T[3]}, {sCQ}, {sW}", f"s_lshl_b32 {T[3]}, {T[3]}, 6")
    def wq_slot(ks):
        return 8 + ks if ks < 20 else (ks - 20 if ks < 28 else ks - 20)
    def wq_dma(ks):
        E(f"s_add_u32 m0, {T[2]}, {wq_slot(ks)*1024}", "s_nop 0",
          f"buffer_load_dwordx4 v30, {SA}, {T[3]} offen lds ;@wq{ks}", f"s_add_u32 {T[3]}, {T[3]}, 16384")
    E("v_mov_b32 v30, v32", "v_mov_b32 v31, v33")
    for ks in range(20):
        wq_dma(ks)
    srd(4, 56, 0x10000000)
    E(f"s_add_u32 s12, s56, {X2}", "s_addc_u32 s13, s57, 0", "s_mov_b32 s14, 0x200000", "s_mov_b32 s15, 0x20000")
    srd(20, 50, 1024)
    srd(24, 46, 3584)
    E(f"s_and_b32 {T[4]}, {sC}, 7", f"s_lshl2_add_u32 {T[4]}, {T[4]}, {sW}", f"s_lshl_b32 {T[4]}, {T[4]}, 5",
      "v_lshrrev_b32 v35, 9, v1", "v_lshlrev_b32 v35, 4, v35",
      f"buffer_load_dwordx4 {ar(AB2,4)}, v35, {SB}, {T[4]} offen ;@b2")
    E(f"s_getreg_b32 {sXCC}, hwreg(HW_REG_XCC_ID, 0, 4)", f"s_mov_b32 {sONE}, 0x3f803f80", f"s_mov_b32 {sBUD}, 0x40000",
      f"s_mov_b32 {sLAY}, 0", f"s_mov_b32 {sSAFE}, 0", f"s_mov_b32 {sHI}, 0xffff0000",
      f"s_lshl_b32 {sGR}, {sG}, 21", f"s_add_u32 {sGR}, {sGR}, {GRP0}",
      f"s_lshl_b32 {sFL}, {sG}, 11", f"s_add_u32 {sFL}, {sFL}, {GFL0}",
      f"s_mov_b32 {sKV}, {KV0}", f"s_mov_b32 {sKVF}, {KVF0}",
      f"s_mul_i32 {sM0K}, {sW}, {2*TS}", f"s_add_u32 {sM0K}, {sM0K}, {RING}",
      f"s_mov_b32 s88, {f2u(-0.7978845608028654*2*1.4426950408889634*0.044715)}",
      f"s_mov_b32 s89, {f2u(-0.7978845608028654*2*1.4426950408889634)}",
      f"s_cmp_eq_u32 {sW}, 0", "s_cselect_b32 s94, 1, 0", "s_mov_b32 s95, 0")
    E(f"v_mov_b32 {vIDX}, 0xdddddddd", f"v_add_u32 {vK}, {RING}, v1",
      "v_lshrrev_b32 v35, 9, v1", "v_and_b32 v4, 0xf0, v1", "v_lshl_add_u32 v4, v35, 8, v4",
      f"v_add_u32 v4, {RING+1024}, v4", "v_add_u32 v5, 512, v4", "v_and_b32 v35, 0x100, v1", "v_cmp_ne_u32 vcc, 0, v35",
      f"v_mov_b32 v35, {RING+2048}", "v_cndmask_b32 v4, v4, v35, vcc", "v_cndmask_b32 v5, v5, v35, vcc")
    E("s_waitcnt lgkmcnt(0)", f"s_add_u32 {sF}, {sF}, 0x9e3779b9", f"v_mov_b32 {vF}, {sF}")

    def p1_addr():
        E(f"s_mul_i32 {T[7]}, {sW}, 8320", f"s_add_u32 {T[7]}, {T[7]}, {XT}",
          "v_lshrrev_b32 v96, 7, v1", "v_mul_u32_u24 v112, 1040, v96", "v_and_b32 v97, 0x70, v1",
          f"v_add3_u32 v112, v112, v97, {T[7]}",
          f"s_lshl_b32 {T[7]}, {sW}, 5", f"s_add_u32 {T[7]}, {T[7]}, {L_MU}", f"v_lshl_add_u32 v114, v96, 2, {T[7]}",
          f"s_lshr_b32 {T[8]}, {sCQ}, 1",
          f"s_mul_i32 {T[7]}, {T[8]}, {16*1040}", f"s_lshl_b32 {T[9]}, {sW}, 8", f"s_add_u32 {T[7]}, {T[7]}, {T[9]}",
          f"s_add_u32 {T[7]}, {T[7]}, {XT}",
          "v_bfe_u32 v96, v1, 4, 4", "v_lshrrev_b32 v97, 8, v1",
          "v_mul_u32_u24 v113, 1040, v96", "v_lshl_add_u32 v113, v97, 4, v113", f"v_add_u32 v113, {T[7]}, v113",
          f"s_lshl_b32 {T[7]}, {sW}, 10", f"s_add_u32 {T[7]}, {T[7]}, {L_KVP}", f"v_add_u32 v115, {T[7]}, v1",
          f"s_bitcmp1_b32 {sCQ}, 0", "s_cselect_b64 vcc, -1, 0", f"s_cselect_b32 {T[9]}, 4, 0",
          f"s_lshl_b32 {T[7]}, {T[8]}, 6", f"s_add_u32 {T[7]}, {T[7]}, {L_MU}",
          "v_lshlrev_b32 v98, 2, v97", "v_cndmask_b32 v98, v96, v98, vcc", f"v_lshl_add_u32 v116, v98, 2, {T[7]}",
          f"v_add_u32 v117, {T[9]}, v116", f"v_add_u32 v118, {T[9]}, v117", f"v_add_u32 v119, {T[9]}, v118",
          "v_lshrrev_b32 v100, 1, v97", "v_and_b32 v101, 1, v97", "v_lshlrev_b32 v101, 3, v101",
          "v_lshl_add_u32 v98, v100, 9, v101", "v_lshl_add_u32 v98, v96, 4, v98",
          f"s_lshl_b32 {T[7]}, {T[8]}, 8", f"v_add_u32 v98, {T[7]}, v98",
          "v_lshl_add_u32 v99, v100, 8, v101", "v_and_b32 v100, 0x30, v1", "v_add_u32 v99, v99, v100",
          "v_bfe_u32 v100, v1, 6, 1", "v_lshl_add_u32 v99, v100, 7, v99",
          "v_bfe_u32 v100, v1, 7, 1", "v_lshl_add_u32 v99, v100, 6, v99",
          f"s_lshl_b32 {T[7]}, {T[8]}, 9", f"s_add_u32 {T[7]}, {T[7]}, 1024", f"v_add_u32 v99, {T[7]}, v99",
          "v_cndmask_b32 v121, v98, v99, vcc",
          "v_bfe_u32 v96, v1, 4, 5", "v_lshrrev_b32 v97, 9, v1",
          f"v_mul_u32_u24 {vXB}, 1040, v96", f"v_lshl_add_u32 {vXB}, v97, 4, {vXB}", f"v_add_u32 {vXB}, {XT}, {vXB}",
          f"s_lshl2_add_u32 {T[7]}, {sCQ}, {sW}", f"s_lshl_b32 {T[7]}, {T[7]}, 6", f"v_add_u32 v122, {T[7]}, {vXB}",
          "v_lshlrev_b32 v96, 2, v96", f"v_add_u32 v123, {L_MU}, v96",
          f"s_lshl_b32 {T[7]}, {sW}, 7", f"s_add_u32 {T[7]}, {T[7]}, {L_CSQ}",
          f"v_add_u32 v124, {T[7]}, v96", f"v_lshl_add_u32 v125, v97, 4, {T[7]}",
          f"s_lshl_b32 {T[8]}, {sG}, 3", f"s_add_u32 {T[8]}, {T[8]}, {sRB}", f"s_lshl_b32 {T[8]}, {T[8]}, 11",
          f"s_add_u32 {T[8]}, {T[8]}, {sKV}",
          f"s_lshl_b32 {T[9]}, {sG}, 5", f"s_add_u32 {T[9]}, {T[9]}, {sC}", f"s_lshl2_add_u32 {T[9]}, {T[9]}, {sKVF}")
        E([f"v_mov_b32 v{84+i}, 0" for i in range(4)])

    def p1(first):
        if first:
            E("v_mov_b32 v126, v34")
            E([f"v_mov_b32 v{108+i}, {sONE}" for i in range(4)])
        E("WAIT vm=x")
        stamp()
        E([f"ds_read_b128 {vr(32+4*i,4)}, v112 offset:{i*128} ;@st{i}" for i in range(8)])
        if first:
            E("WAIT vm=wkv")
            for ks in range(4):
                E(f"ds_read_b64_tr_b16 {ar(AKV+4*ks,2)}, v126 offset:{ks*1024}",
                  f"ds_read_b64_tr_b16 {ar(AKV+4*ks+2,2)}, v126 offset:{ks*1024+128}")
        E("s_barrier")
        E([f"ds_read_b128 {vr(64+4*i,4)}, v113 offset:{i*64} ;@kx" for i in range(4)])
        def dots(i):
            L = []
            for r in range(4):
                x = 32 + 4*i + r
                L += [f"v_dot2c_f32_bf16 v{84+(r&1)}, {sONE}, v{x}", f"v_dot2c_f32_bf16 v{86+(r&1)}, v{x}, v{x}"]
            return L
        for i in range(4):
            E(f"WAIT lg=st{i}", dots(i))
        E(f"s_bitcmp1_b32 {sCQ}, 0", "WAIT lg=0")
        lv = P.lab("KVV"); ld = P.lab("KVD")
        E(f"s_cbranch_scc1 {lv}")
        def kvm(isv_):
            L = []
            for ks in range(4):
                w = ar(AKV+4*ks, 4); x = vr(64+4*ks, 4); on = vr(108, 4)
                a, b = (x, w) if isv_ else (w, x)
                L.append(f"v_mfma_f32_16x16x32_bf16 v[80:83], {a}, {b}, {'0' if ks == 0 else 'v[80:83]'}")
                if first:
                    a, b = (on, w) if isv_ else (w, on)
                    L.append(f"v_mfma_f32_16x16x32_bf16 {vr(CK,4)}, {a}, {b}, {'0' if ks == 0 else vr(CK,4)}")
            return L
        E(kvm(False), f"{ld}:")
        P.out_of_line(f"{lv}:", kvm(True), f"s_branch {ld}")
        for i in range(4, 8):
            E(dots(i))
        E("ds_write_b128 v115, v[80:83]")
        if first:
            E(f"ds_write_b128 v115, {vr(CK,4)} offset:{L_CKP-L_KVP}")
        E("v_add_f32 v84, v84, v85", "v_add_f32 v86, v86, v87")
        for d in ("quad_perm:[1,0,3,2]", "quad_perm:[2,3,0,1]", "row_half_mirror"):
            E(f"v_add_f32_dpp v84, v84, v84 {d} row_mask:0xf bank_mask:0xf",
              f"v_add_f32_dpp v86, v86, v86 {d} row_mask:0xf bank_mask:0xf")
        E(f"v_mul_f32 v84, {f2u(1/512)}, v84", f"v_mul_f32 v86, {f2u(1/512)}, v86",
          "v_fma_f32 v86, -v84, v84, v86", "v_max_f32 v86, 0, v86", f"v_add_f32 v86, {f2u(1e-5)}, v86",
          "v_rsq_f32 v86, v86", "s_nop 0", "ds_write2_b32 v114, v84, v86 offset1:32",
          f"s_cmp_lg_u32 {sW}, 0", "WAIT lg=0", "s_barrier")
        lk = P.lab("KVSKIP")
        E(f"s_cbranch_scc1 {lk}")
        E([f"ds_read_b128 {vr(64+4*i,4)}, v115 offset:{1024*(i+1)} ;@opt" for i in range(3)])
        if first:
            E([f"ds_read_b128 {vr(96+4*i,4)}, v115 offset:{L_CKP-L_KVP+1024*(i+1)} ;@opt" for i in range(3)])
        E([f"ds_read2_b32 {vr(88+2*i,2)}, v{116+i} offset1:32 ;@opt" for i in range(4)])
        E("WAIT lg=4")
        for i in range(3):
            E(f"v_pk_add_f32 v[80:81], v[80:81], {vr(64+4*i,2)}", f"v_pk_add_f32 v[82:83], v[82:83], {vr(66+4*i,2)}")
        if first:
            for i in range(3):
                E(f"v_pk_add_f32 {vr(CK,2)}, {vr(CK,2)}, {vr(96+4*i,2)}", f"v_pk_add_f32 {vr(CK+2,2)}, {vr(CK+2,2)}, {vr(98+4*i,2)}")
        E("WAIT lg=0")
        E([f"v_fma_f32 v{80+i}, -v{88+2*i}, v{CK+i}, v{80+i}" for i in range(4)])
        E([f"v_mul_f32 v{80+i}, v{80+i}, v{89+2*i}" for i in range(4)])
        E("v_cvt_pk_bf16_f32 v80, v80, v81", "v_cvt_pk_bf16_f32 v81, v82, v83",
          f"buffer_store_dwordx2 v[80:81], v121, {WS}, {T[8]} offen sc1 ;@opt kvst")
        E(f"{lk}:")
        stamp()
        def trq(ks):
            return [f"ds_read_b64_tr_b16 {vr(R+4*ks,2)}, v31 offset:{wq_slot(ks)*1024}",
                    f"ds_read_b64_tr_b16 {vr(R+4*ks+2,2)}, v31 offset:{wq_slot(ks)*1024+256}"]
        if first:
            for ks in range(20, 24):
                wq_dma(ks)
            E("WAIT vm=prep")
            for i in range(4):
                E(f"ds_read_b64_tr_b16 {vr(64+4*i,2)}, v28 offset:{(4+i)*1024}",
                  f"ds_read_b64_tr_b16 {vr(66+4*i,2)}, v29 offset:{(4+i)*1024}")
            E("WAIT vm=wq3")
            for ks in range(4):
                E(trq(ks))
            E("WAIT lg=0")
            for ks in range(24, 32):
                wq_dma(ks)
            for i in range(4):
                E(f"v_mfma_f32_16x16x32_bf16 v[96:99], {vr(64+4*i,4)}, v[108:111], {'0' if i == 0 else 'v[96:99]'}",
                  f"buffer_store_dwordx4 {vr(64+4*i,4)}, {vL}, {WS}, {sPD} offen offset:{i*1024} sc1")
            E("v_lshrrev_b32 v100, 8, v1", "v_lshlrev_b32 v100, 4, v100",
              f"buffer_store_dwordx4 v[96:99], v100, {WS}, {T[6]} offen sc1")
        E("v_mov_b32 v84, 0", "v_mov_b32 v85, 0")
        D = 4 if first else 6
        def rd(ks):
            L = []
            if first and ks >= 4:
                if ks % 4 == 0:
                    L.append(f"WAIT vm=wq{ks+3}")
                L += trq(ks)
            L.append(f"ds_read_b128 {vr(48+4*(ks%8),4)}, {vXB} offset:{ks*32} ;@qb{ks}")
            return L
        def kvflag():
            E(f"s_add_u32 {T[7]}, {sF}, {sXCC}", f"v_mov_b32 v86, {T[7]}", f"s_mov_b64 exec, {sW0}", "WAIT vm=kvst",
              f"buffer_store_dword v86, off, {WS}, {T[9]} sc1 ;@opt", "s_mov_b64 exec, -1")
        for ks in range(D):
            E(rd(ks))
        for ks in range(32):
            E(f"WAIT lg=qb{ks}")
            E(f"v_mfma_f32_32x32x16_bf16 v[32:47], {vr(R+4*ks,4)}, {vr(48+4*(ks%8),4)}, {'0' if ks == 0 else 'v[32:47]'}")
            if first and ks + D == 20:
                kvflag()
            if ks + D < 32:
                E(rd(ks + D))
            elif ks + D == 32:
                E(f"ds_read_b128 {vr(RES,4)}, v122", f"ds_read_b128 {vr(RES+4,4)}, v122 offset:32",
                  "ds_read2_b32 v[88:89], v123 offset1:32")
            E([f"v_dot2c_f32_bf16 v{84+(r&1)}, {sONE}, v{R+4*ks+r}" for r in range(4)])
        E("v_add_f32 v84, v84, v85", "v_mov_b32 v85, v84", "v_permlane32_swap_b32 v84, v85", "v_add_f32 v84, v84, v85",
          "ds_write_b32 v124, v84")
        E([f"ds_read_b128 {vr(96+4*a,4)}, v125 offset:{a*32}" for a in range(4)])
        if first:
            E(f"s_lshl_b32 {T[4]}, {sG}, 3", f"s_add_u32 {T[4]}, {T[4]}, {sRB}",
              f"s_lshl2_add_u32 {T[5]}, {sCQ}, {sW}", f"s_lshl_b32 {T[5]}, {T[5]}, 5", f"s_add_u32 {T[5]}, {T[5]}, {T[4]}",
              f"s_lshl_b32 {T[5]}, {T[5]}, 10", f"s_add_u32 {T[5]}, {T[5]}, {WQF}",
              f"s_cmp_lt_u32 {T[4]}, 32", f"s_cselect_b32 {T[5]}, {T[5]}, 0x20000000",
              f"s_and_b32 {T[4]}, {T[4]}, 31", f"s_lshl_b32 {T[4]}, {T[4]}, 2",
              f"s_set_gpr_idx_on {T[4]}, gpr_idx(SRC0)")
            E([f"v_mov_b32 v{64+i}, v{R+i}" for i in range(4)])
            E("s_set_gpr_idx_off", f"buffer_store_dwordx4 v[64:67], {vL}, {WS}, {T[5]} offen sc1")
        else:
            kvflag()
        E("WAIT lg=0", f"v_mul_f32 v89, {f2u(0.25*1.4426950408889634)}, v89")
        for i in range(8):
            E(f"v_pk_fma_f32 {vr(32+2*i,2)}, {vr(96+2*i,2)}, v[88:89], {vr(32+2*i,2)} op_sel_hi:[1,0,1] neg_lo:[0,1,0] neg_hi:[0,1,0]")
        for i in range(8):
            E(f"v_pk_mul_f32 {vr(32+2*i,2)}, {vr(32+2*i,2)}, v[88:89] op_sel:[0,1]")
        for i in range(8):
            E(f"v_cvt_pk_bf16_f32 v{Q+i}, v{32+2*i}, v{33+2*i}")

    p1_addr()
    p1(True)

    S = [32, 48]; O = [64, 80]; KF = [96, 100]; VL = [104, 108]; VH = [112, 116]
    E("LAYER:")
    stamp()
    E("s_barrier")
    E("v_bfe_u32 v96, v1, 4, 4", f"v_mul_u32_u24 v96, {TS}, v96", f"v_add_u32 v96, {RING+2048}, v96")
    E([f"v_mov_b32 v{100+i}, {sONE}" for i in range(4)])
    E("ds_write_b128 v96, v[100:103]")
    E([f"v_mov_b32 v{64+i}, 0" for i in range(32)])
    E(f"s_lshl_b32 {T[0]}, {sW}, 12", f"s_add_u32 {T[0]}, {T[0]}, {sKV}", f"v_add_u32 v126, {T[0]}, v1",
      f"s_lshl_b32 {sCH}, {sG}, 14",
      f"s_and_b32 {T[0]}, {sW}, 1", f"s_lshl_b32 {T[0]}, {T[0]}, 8", f"v_xor_b32 v124, {T[0]}, v1",
      f"s_and_b32 {T[1]}, {sC}, 15", f"s_mul_i32 {sM0W}, {sW}, 28672", f"s_mul_i32 {sA1}, {T[1]}, 114688",
      f"s_add_u32 {sA1}, {sA1}, {sM0W}", f"s_add_u32 {sA1}, {sA1}, {W1F}",
      f"s_mul_i32 {T[1]}, {T[1]}, 112", f"s_lshl_b32 {T[0]}, {sW}, 5", f"s_add_u32 {T[1]}, {T[1]}, {T[0]}",
      "v_bfe_u32 v125, v1, 4, 5", f"v_add_u32 v125, {T[1]}, v125", "v_lshlrev_b32 v127, 2, v125", "v_lshlrev_b32 v125, 1, v125",
      f"s_and_b32 {T[0]}, {sC}, 7", f"s_lshl_b32 {T[0]}, {T[0]}, 1", f"s_lshr_b32 {T[1]}, {sW}, 1", f"s_add_u32 {T[0]}, {T[0]}, {T[1]}",
      f"s_xor_b32 {T[1]}, {T[0]}, 1", f"s_mul_i32 {sA2a}, {T[0]}, 114688", f"s_mul_i32 {sA2b}, {T[1]}, 114688",
      f"s_add_u32 {T[0]}, {sM0W}, {W2F}", f"s_add_u32 {sA2a}, {sA2a}, {T[0]}", f"s_add_u32 {sA2b}, {sA2b}, {T[0]}",
      f"s_lshl2_add_u32 {sAO}, {sCQ}, {sW}", f"s_lshl_b32 {sAO}, {sAO}, 15", f"s_add_u32 {sAO}, {sAO}, {WOF}",
      f"s_lshl_b32 {T[0]}, {sG}, 7", f"s_add_u32 {T[0]}, {T[0]}, {sKVF}", "v_bfe_u32 v121, v1, 2, 7",
      f"s_lshl_b32 {T[2]}, s2, 2", f"s_add_u32 {T[2]}, {T[2]}, {PREPF}", f"s_mov_b32 {T[3]}, {PREPF}")
    poll("v121", T[0], rng=True, inv=False)
    def kv_dma(slot):
        L = []
        for k in range(4):
            pre = []
            if k % 2 == 0:
                pre = [f"s_add_u32 m0, {sM0K}, {slot*SLOT + (k>>1)*16}"]
            L.append((pre, f"buffer_load_dwordx4 v126, {WS}, {sCH} offen offset:{k*1024} sc1 lds ;@kv"))
        return L
    adv = [f"s_add_u32 {sCH}, {sCH}, 0x4000", f"s_and_b32 {sCH}, {sCH}, 0x1ffff"]
    for pre, x in kv_dma(0):
        E(pre, x)
    E(adv)
    E(f"v_cmp_ne_u32 vcc, {sXCC}, v120", "s_cmp_lg_u64 vcc, 0", f"s_cselect_b32 {sSAFE}, 1, {o['force_safe']}")
    stamp()
    E("WAIT vm=0 lg=0", "s_barrier")
    E(f"ds_read_b128 {vr(KF[0],4)}, {vK}", f"ds_read_b128 {vr(VL[0],4)}, {vVlo}", f"ds_read_b128 {vr(VH[0],4)}, {vVhi}")
    E(f"s_mov_b64 exec, {sW0}", f"buffer_store_dword {vF}, off, {WS}, {T[2]} sc1 ;@opt", "s_mov_b64 exec, -1")
    E("WAIT lg=0")
    stamp()
    def QK(t):
        return f"v_mfma_f32_32x32x16_bf16 {vr(S[t&1],16)}, {vr(KF[(t>>1)&1],4)}, {vr(Q+4*(t&1),4)}, 0"
    def PV(t, hi):
        v = (VH if hi else VL)[(t>>1)&1]
        return f"v_smfmac_f32_32x32x32_bf16 {vr(O[t&1],16)}, {vr(v,4)}, {vr(S[t&1]+8*hi,8)}, {vIDX}"
    W = []
    for i in range(28):
        pre = []
        if i % 4 == 0 and i:
            pre += [f"s_add_u32 {sA1}, {sA1}, 4096", f"s_add_u32 {sM0W}, {sM0W}, 4096"]
        W.append((pre, f"buffer_load_dwordx4 {vL}, {WS}, {sA1} offen offset:{(i&3)*1024} sc1 lds", "m0w"))
    for i in range(32):
        pre = [f"s_add_u32 {sAO}, {sAO}, 4096"] if (i % 4 == 0 and i) else []
        W.append((pre, f"buffer_load_dwordx4 {vr(R+4*i,4)}, {vL}, {WS}, {sAO} offen offset:{(i&3)*1024} sc1", None))
    for i in range(4):
        W.append(([f"s_mov_b32 {T[4]}, {CS1+i*7168}"], f"buffer_load_dword v{28+i}, v127, {WS}, {T[4]} offen sc1", None))
    W.append(([], f"buffer_load_ushort v127, v125, {SC}, 0 offen", None))
    for ct in range(2):
        s = sA2b if ct else sA2a
        for i in range(28):
            pre = [f"s_add_u32 {s}, {s}, 4096"] if (i % 4 == 0 and i) else []
            W.append((pre, f"buffer_load_dwordx4 {ar((i*2+ct)*4,4)}, v124, {WS}, {s} offen offset:{(i&3)*1024} sc1", None))
    pos = {(t, p): [] for t in range(128) for p in range(3)}
    def prevpos(t, p):
        return (t, p-1) if p else (t-1, 2)
    used = set()
    m0state = [None]
    def place(t, p, pre, ins, m0=None):
        pre = list(pre)
        if m0 == "m0w" and (m0state[0] != "w" or pre):
            pre.append(f"s_mov_b32 m0, {sM0W}"); m0state[0] = "w"
        pos[prevpos(t, p)] += pre
        pos[(t, p)].append(ins)
        used.add((t, p))
    def check(regs4, limit, soff):
        rt = P.lab("RETRY"); bk = P.lab("BACK"); fl = P.lab("RFAIL")
        b = regs4
        chk = [f"v_sad_u32 v{b}, v{b}, {vF}, 0"] + [f"v_sad_u32 v{b}, v{b+i}, {vF}, v{b}" for i in (1, 2, 3)] + \
              [f"v_cmp_lt_u32 vcc, {limit}, v{b}"]
        P.out_of_line(f"{rt}:", f"buffer_load_dwordx4 {vr(b,4)}, {vL}, {WS}, {soff} offen sc1",
                      f"s_sub_u32 {sBUD}, {sBUD}, 1", f"s_cbranch_scc1 {fl}", "s_waitcnt vmcnt(0)", chk,
                      f"s_cbranch_vccnz {rt}", f"s_branch {bk}",
                      f"{fl}:", f"s_mov_b32 {sBUD}, 0", "s_waitcnt vmcnt(0)", f"s_branch {bk}")
        return chk + [f"s_cbranch_vccnz {rt}", f"{bk}:"]
    for j in range(63):
        ch = (j + 1) >> 3; tl = (j + 1) & 7; off = (ch & 1)*SLOT + tl*TS; b = (j + 1) & 1
        pos[(2*j, 0)].append(f"ds_read_b128 {vr(KF[b],4)}, {vK} offset:{off} ;@kf")
        pos[(2*j, 1)].append(f"ds_read_b128 {vr(VL[b],4)}, {vVlo} offset:{off}")
        pos[(2*j, 2)].append(f"ds_read_b128 {vr(VH[b],4)}, {vVhi} offset:{off}")
        pos[(2*j+1, 0)].append("WAIT lg=kf")
        if j % 8 == 6 and j < 62:
            pos[(2*j+1, 2)] += ["WAIT vm=kv lg=0", "s_barrier"]
        else:
            pos[(2*j+1, 2)].append("WAIT lg=0")
    sched = {}
    sl, sc_ = o["s2_load"], o["s2_chk"]
    sched[(sl, 0)] = ([], f"buffer_load_dwordx4 v[120:123], {vL}, {WS}, {sKVF} offen sc1 ;@f2", None)
    pos[(sc_-1, 2)] += ["WAIT vm=f2"] + check(120, 63, sKVF)
    kd = kv_dma(1)
    for k, q in enumerate([(sc_, 0), (sc_, 1), (sc_, 2), (sc_+2, 0)]):
        sched[q] = (kd[k][0], kd[k][1], "kv")
    pos[(sc_+2, 1)] += adv
    sched[(o["pf_load"], 0)] = ([], f"buffer_load_dwordx4 v[120:123], {vL}, {WS}, {T[3]} offen sc1 ;@f3", None)
    pos[(o["pf_chk"]+1, 2)] += ["WAIT vm=f3"] + check(120, 0, T[3])
    for i in range(6):
        kd = kv_dma(i & 1)
        for k, q in enumerate([(16*i+13, 2), (16*i+15, 0), (16*i+15, 1), (16*i+15, 2)]):
            sched[q] = (kd[k][0], kd[k][1], "kv")
        pos[(16*i+16, 0)] += adv
    wi = 0
    for t in range(1, 128, 2):
        for p in range(3):
            if (t, p) in sched:
                pre, ins, k = sched[(t, p)]
                place(t, p, pre, ins)
                if k == "kv":
                    m0state[0] = "kv"
            elif t > o["pf_chk"] + 2 and wi < len(W):
                place(t, p, *W[wi]); wi += 1
    assert wi == len(W), wi
    E(QK(0))
    for t in range(128):
        e = [f"v_exp_f32 v{S[t&1]+i}, v{S[t&1]+i}" for i in range(16)]
        E(e[0:2])
        if t:
            E(PV(t-1, 1))
        E(pos[(t, 0)], e[2:5])
        if t < 127:
            E(QK(t+1))
        E(pos[(t, 1)], e[5:11], PV(t, 0), pos[(t, 2)], e[11:16])
    E(f"s_lshl2_add_u32 {T[1]}, {sCQ}, {sW}", f"s_lshl_b32 {T[0]}, {sRB}, 4", PV(127, 1))
    LO = f2u(2.0**-60); HI = f2u(2.0**60)
    E(f"s_add_u32 {T[1]}, {T[1]}, {T[0]}",
      f"s_lshl_b32 {T[0]}, {T[1]}, 11", f"s_add_u32 {T[0]}, {T[0]}, {sGR}",
      f"s_lshl_b32 {T[6]}, {T[1]}, 8", f"s_add_u32 {T[6]}, {T[6]}, {sGR}", f"s_add_u32 {T[6]}, {T[6]}, {G_ST}",
      f"s_lshl2_add_u32 {T[1]}, {T[1]}, {sFL}",
      f"v_subrev_u32 v120, {LO}, v{O[0]+8}", f"s_mov_b32 {T[4]}, {HI-LO}",
      f"v_subrev_u32 v121, {LO}, v{O[1]+8}", "v_max_u32 v120, v120, v121", f"v_cmp_lt_u32 vcc, {T[4]}, v120")
    if o["force_slow"]:
        E("s_branch SLOW")
    E("s_cbranch_vccnz SLOW", "SLOWD:")
    stamp()
    for h in range(2):
        E(f"v_rcp_f32 v{O[h]+8}, v{O[h]+8}")
    for h in range(2):
        E([f"v_pk_mul_f32 {vr(O[h]+2*i,2)}, {vr(O[h]+2*i,2)}, {vr(O[h]+8,2)} op_sel_hi:[1,0]" for i in range(4)])
        E([f"v_cvt_pk_bf16_f32 v{O[h]+i}, v{O[h]+2*i}, v{O[h]+2*i+1}" for i in range(4)])
        E(f"buffer_store_dwordx4 {vr(O[h],4)}, {vL}, {WS}, {T[0]} offen offset:{h*1024} ;@ost")
    sl_ = ["SLOW:", "v_mov_b32 v121, 0xff800000", "v_mov_b32 v122, 0xff800000", f"s_mov_b32 {T[4]}, {sKV}", f"s_mov_b32 {T[5]}, 64",
           "SLOW1:", f"buffer_load_dwordx4 {vr(KF[0],4)}, {vL}, {WS}, {T[4]} offen sc1", "s_waitcnt vmcnt(0)", QK(0), QK(1)]
    for h in range(2):
        sl_ += [f"v_max3_f32 v{121+h}, v{S[h]+2*i}, v{S[h]+2*i+1}, v{121+h}" for i in range(8)]
    sl_ += [f"s_add_u32 {T[4]}, {T[4]}, 2048", f"s_sub_u32 {T[5]}, {T[5]}, 1", f"s_cmp_lg_u32 {T[5]}, 0", "s_cbranch_scc1 SLOW1"]
    for h in range(2):
        sl_ += [f"v_mov_b32 v123, v{121+h}", f"v_permlane32_swap_b32 v{121+h}, v123", f"v_max_f32 v{121+h}, v{121+h}, v123"]
    sl_ += [f"v_mov_b32 v{64+i}, 0" for i in range(32)]
    sl_ += ["v_lshrrev_b32 v120, 9, v1", "v_and_b32 v123, 0xf0, v1", "v_lshl_add_u32 v123, v120, 8, v123",
            "v_and_b32 v120, 0x100, v1", "v_cmp_ne_u32 vcc, 0, v120", f"v_mov_b32 v120, {sONE}",
            f"s_mov_b32 {T[4]}, {sKV}", f"s_mov_b32 {T[5]}, 64",
            "SLOW2:", f"buffer_load_dwordx4 {vr(KF[0],4)}, {vL}, {WS}, {T[4]} offen sc1",
            f"buffer_load_dwordx4 {vr(VL[0],4)}, v123, {WS}, {T[4]} offen offset:1024 sc1",
            f"buffer_load_dwordx4 {vr(VH[0],4)}, v123, {WS}, {T[4]} offen offset:1536 sc1", "s_waitcnt vmcnt(0)", QK(0), QK(1)]
    sl_ += [f"v_cndmask_b32 v{b+i}, v{b+i}, v120, vcc" for b in (VL[0], VH[0]) for i in range(4)]
    for h in range(2):
        sl_ += [f"v_sub_f32 v{S[h]+i}, v{S[h]+i}, v{121+h}" for i in range(16)]
        sl_ += [f"v_exp_f32 v{S[h]+i}, v{S[h]+i}" for i in range(16)]
    sl_ += [PV(0, 0), PV(0, 1), PV(1, 0), PV(1, 1), "s_nop 7", "s_nop 7",
            f"s_add_u32 {T[4]}, {T[4]}, 2048", f"s_sub_u32 {T[5]}, {T[5]}, 1", f"s_cmp_lg_u32 {T[5]}, 0", "s_cbranch_scc1 SLOW2",
            "s_branch SLOWD"]
    P.out_of_line(sl_)

    for i in range(8):
        E(f"v_lshlrev_b32 v{32+2*i}, 16, v{RES+i}", f"v_and_b32 v{33+2*i}, {sHI}, v{RES+i}")
    E("WAIT vm=2", "v_add_f32 v28, v28, v29", "v_add_f32 v30, v30, v31", "v_lshlrev_b32 v127, 16, v127", "v_add_f32 v28, v28, v30",
      f"s_lshl_b32 {T[4]}, {sW}, 8", f"s_add_u32 {T[4]}, {T[4]}, {L_TB}",
      "v_bfe_u32 v29, v1, 6, 3", f"v_lshl_add_u32 v29, v29, 5, {T[4]}", "v_bfe_u32 v30, v1, 4, 2", "v_lshl_add_u32 v29, v30, 2, v29",
      "ds_write2_b32 v29, v28, v127 offset1:4")
    E(f"s_lshl_b32 {T[2]}, {sRB}, 6", f"s_add_u32 {T[2]}, {T[2]}, {sFL}", "v_bfe_u32 v121, v1, 2, 6",
      f"s_lshl_b32 {T[3]}, {sRB}, 4", f"s_add_u32 {T[3]}, {T[3]}, {sW}", f"s_lshl_b32 {T[3]}, {T[3]}, 11", f"s_add_u32 {T[3]}, {T[3]}, {sGR}",
      f"s_lshl_b32 {T[4]}, {sW}, 11", f"s_add_u32 {T[4]}, {T[4]}, {RING}",
      "v_and_b32 v122, 0xf0, v1", "v_bfe_u32 v123, v1, 8, 1", "v_lshl_add_u32 v122, v123, 3, v122",
      "v_lshrrev_b32 v123, 9, v1", "v_lshl_add_u32 v122, v123, 2, v122",
      "v_mov_b32 v88, 0", "v_mov_b32 v89, 0")
    publish(T[1], F_O)
    stamp()
    E(f"s_mov_b32 m0, {T[4]}")
    poll("v121", T[2], F_O)
    for s in range(4):
        if s:
            E(f"s_add_u32 m0, {T[4]}, {s*8192}", f"s_add_u32 {T[3]}, {T[3]}, 8192")
        E([f"buffer_load_dwordx4 {vL}, {WS}, {T[3]} offen offset:{k*1024} sc1 lds ;@o{s}" for k in range(2)])
    stamp()
    D = 4
    def rdo(ks):
        L = []
        if ks % 8 == 0:
            L += [f"WAIT vm=o{ks//8}" + (" lg=0" if ks == 0 else ""), "s_barrier"]
        L.append(f"ds_read_b128 {vr(48+4*(ks%8),4)}, {vK} offset:{ks*1024} ;@ob{ks}")
        return L
    for ks in range(D):
        E(rdo(ks))
    for ks in range(32):
        E(f"WAIT lg=ob{ks}", f"v_mfma_f32_32x32x16_bf16 v[32:47], {vr(R+4*ks,4)}, {vr(48+4*(ks%8),4)}, v[32:47]")
        if ks + D < 32:
            E(rdo(ks + D))
    E(f"s_add_u32 {T[0]}, {T[0]}, {G_X1}")
    E(f"s_lshr_b32 {T[5]}, {sC}, 4", f"s_lshl2_add_u32 {T[5]}, {T[5]}, {sW}",
      f"s_lshl_b32 {T[2]}, {T[5]}, 6", f"s_add_u32 {T[2]}, {T[2]}, {sFL}",
      f"s_lshl_b32 {T[3]}, {T[5]}, 15", f"s_add_u32 {T[3]}, {T[3]}, {sGR}", f"s_add_u32 {T[3]}, {T[3]}, {G_X1}",
      f"s_lshl_b32 {T[4]}, {T[5]}, 12", f"s_add_u32 {T[4]}, {T[4]}, {sGR}", f"s_add_u32 {T[4]}, {T[4]}, {G_ST}")
    for h in range(2):
        E([f"v_cvt_pk_bf16_f32 v{80+4*h+i}, v{32+8*h+2*i}, v{33+8*h+2*i}" for i in range(4)])
        E(f"buffer_store_dwordx4 {vr(80+4*h,4)}, {vL}, {WS}, {T[0]} offen offset:{h*1024}")
    for i in range(8):
        E(f"v_dot2c_f32_bf16 v88, {sONE}, v{80+i}", f"v_dot2c_f32_bf16 v89, v{80+i}, v{80+i}")
    E("v_permlane32_swap_b32 v88, v89", "v_add_f32 v88, v88, v89", f"buffer_store_dword v88, v122, {WS}, {T[6]} offen")

    AR = 88
    def a1(t, ks, slot):
        off = (t*16 + ks)*1024
        if off < 65536:
            return f"ds_read_b128 {vr(AR+4*slot,4)}, {vL} offset:{off} ;@a{t}_{ks}"
        return f"ds_read_b128 {vr(AR+4*slot,4)}, v124 offset:{off-65536} ;@a{t}_{ks}"
    E("v_add_u32 v124, 0x10000, v1",
      "v_lshrrev_b32 v123, 8, v1", "v_and_b32 v125, 0xf0, v1", "v_lshl_add_u32 v126, v123, 10, v125", "v_lshl_add_u32 v125, v123, 9, v125",
      f"v_lshlrev_b32 v123, 5, v123", f"v_add_u32 v123, {L_TB}, v123",
      f"s_and_b32 {T[7]}, {sC}, 15", f"s_lshl2_add_u32 {T[8]}, {T[7]}, {T[2]}",
      f"s_mul_i32 {T[7]}, {T[7]}, 7168", f"s_mul_i32 {T[5]}, {T[5]}, 114688", f"s_add_u32 {T[7]}, {T[7]}, {T[5]}",
      f"s_add_u32 {T[7]}, {T[7]}, {sGR}", f"s_add_u32 {T[7]}, {T[7]}, {G_H}",
      f"s_lshl2_add_u32 {T[9]}, {sCQ}, {sW}", f"s_lshl_b32 {T[9]}, {T[9]}, 15", f"s_add_u32 {T[9]}, {T[9]}, {WQF}",
      f"s_cmp_eq_u32 {sLAY}, 0", f"s_cselect_b32 {T[9]}, {T[9]}, 0x20000000")
    publish(T[1], F_X1)
    stamp()
    E([a1(t, 0, t) for t in range(4)])
    poll("v121", T[2], F_X1)
    E([f"buffer_load_dwordx4 {vr(12+4*i,4)}, v126, {WS}, {T[4]} offen offset:{i*256} sc1 ;@sts" for i in range(4)])
    for ks in range(16):
        if ks and ks % 2 == 0:
            E(f"s_add_u32 {T[3]}, {T[3]}, 4096")
        E([f"buffer_load_dwordx4 {vr(R+8*ks+4*u,4)}, v125, {WS}, {T[3]} offen offset:{(ks&1)*2048+u*256} sc1 ;@x{ks}" for u in range(2)])
    stamp()
    def acc(t, u):
        return 32 + 8*t + 4*u
    def m1(t, ks, u, slot):
        d = vr(acc(t, u), 4)
        return f"v_mfma_f32_16x16x32_bf16 {d}, {vr(AR+4*slot,4)}, {vr(R+8*ks+4*u,4)}, {'0' if ks == 0 else d}"
    st = []
    st += ["v_pk_add_f32 v[12:13], v[12:13], v[16:17]", "v_pk_add_f32 v[14:15], v[14:15], v[18:19]",
           "v_pk_add_f32 v[20:21], v[20:21], v[24:25]", "v_pk_add_f32 v[22:23], v[22:23], v[26:27]",
           "v_pk_add_f32 v[12:13], v[12:13], v[20:21]", "v_pk_add_f32 v[14:15], v[14:15], v[22:23]"]
    for sw in ("v_permlane32_swap_b32", "v_permlane16_swap_b32"):
        st += [f"v_mov_b32 v{16+i}, v{12+i}" for i in range(4)]
        st += [f"{sw} v{12+i}, v{16+i}" for i in range(4)]
        st += ["v_pk_add_f32 v[12:13], v[12:13], v[16:17]", "v_pk_add_f32 v[14:15], v[14:15], v[18:19]"]
    st += [f"v_mul_f32 v{12+i}, {f2u(1/512)}, v{12+i}" for i in range(4)]
    st += ["v_fma_f32 v13, -v12, v12, v13", "v_fma_f32 v15, -v14, v14, v15", "v_max_f32 v13, 0, v13", "v_max_f32 v15, 0, v15",
           f"v_add_f32 v13, {f2u(1e-5)}, v13", f"v_add_f32 v15, {f2u(1e-5)}, v15", "v_rsq_f32 v28, v13", "v_rsq_f32 v30, v15",
           "v_mul_f32 v29, -v12, v28", "v_mul_f32 v31, -v14, v30"]
    def gelu(t):
        L = [f"ds_read_b128 v[112:115], v123 offset:{t*128}", f"ds_read_b128 v[116:119], v123 offset:{t*128+16} ;@tb", "WAIT lg=tb"]
        pr = [(acc(t, u) + 2*k, 28 + 2*u, k, 12 + 4*u + 2*k) for u in range(2) for k in range(2)]
        L += [f"v_pk_fma_f32 {vr(a,2)}, {vr(a,2)}, {vr(s,2)}, {vr(116+2*k,2)} op_sel_hi:[1,0,1]" for a, s, k, x in pr]
        L += [f"v_pk_fma_f32 {vr(a,2)}, {vr(112+2*k,2)}, {vr(s,2)}, {vr(a,2)} op_sel:[0,1,0]" for a, s, k, x in pr]
        L += [f"v_pk_mul_f32 {vr(x,2)}, {vr(a,2)}, {vr(a,2)}" for a, s, k, x in pr]
        L += [f"v_pk_fma_f32 {vr(x,2)}, {vr(x,2)}, {sGC}, {sGC} op_sel:[0,0,1] op_sel_hi:[1,0,1]" for a, s, k, x in pr]
        L += [f"v_pk_mul_f32 {vr(x,2)}, {vr(x,2)}, {vr(a,2)}" for a, s, k, x in pr]
        L += [f"v_exp_f32 v{12+i}, v{12+i}" for i in range(8)]
        L += [f"v_pk_add_f32 {vr(x,2)}, {vr(x,2)}, 1.0 op_sel_hi:[1,0]" for a, s, k, x in pr]
        L += [f"v_rcp_f32 v{12+i}, v{12+i}" for i in range(8)]
        L += [f"v_pk_mul_f32 {vr(a,2)}, {vr(a,2)}, {vr(x,2)}" for a, s, k, x in pr]
        ob = 20 + 4*(t & 1)
        L += [f"v_cvt_pk_bf16_f32 v{ob+i}, v{acc(t,0)+2*i}, v{acc(t,0)+2*i+1}" for i in (0, 2, 1, 3)]
        L += ["s_nop 0", f"v_permlane16_swap_b32 v{ob}, v{ob+2}", f"v_permlane16_swap_b32 v{ob+1}, v{ob+3}"]
        if t == 4:
            L.append(f"s_add_u32 {T[7]}, {T[7]}, 4096")
        L.append(f"buffer_store_dwordx4 {vr(ob,4)}, {vL}, {WS}, {T[7]} offen offset:{(t&3)*1024}")
        return L
    fill = list(st)
    E("WAIT vm=sts")
    for ks in range(16):
        b = (ks & 1)*4
        nxt = [a1(t, ks+1, 4-b+t) for t in range(4)] if ks < 15 else [a1(4+t, 0, t) for t in range(3)]
        E(f"WAIT vm=x{ks} lg=0")
        for t in range(4):
            for u in range(2):
                E(m1(t, ks, u, b+t))
                if u == 0 and nxt:
                    E(nxt.pop(0))
                elif fill:
                    E(fill.pop(0))
                    if fill:
                        E(fill.pop(0))
    assert not fill
    fill = []
    for t in range(4):
        fill += gelu(t)
    per = -(-len(fill) // 90)
    for ks in range(16):
        b = (ks & 1)*3
        nxt = [a1(4+t, ks+1, 3-b+t) for t in range(3)] if ks < 15 else []
        wq = []
        if ks:
            k = 2*(ks-1)
            wq = [f"buffer_load_dwordx4 {vr(R+4*(k+i),4)}, {vL}, {WS}, {T[9]} offen offset:{((k+i)&3)*1024} sc1" for i in range(2)]
            if k % 4 == 2:
                wq[1] = [wq[1], f"s_add_u32 {T[9]}, {T[9]}, 4096"]
        E(f"WAIT lg=a6_{ks}")
        for t in range(3):
            for u in range(2):
                E(m1(4+t, ks, u, b+t))
                if u == 0 and nxt:
                    E(nxt.pop(0))
                if u == 1 and wq:
                    E(wq.pop(0))
                if ks or t:
                    for _ in range(per):
                        if fill:
                            E(fill.pop(0))
    E(fill)
    E([f"buffer_load_dwordx4 {vr(R+4*(30+i),4)}, {vL}, {WS}, {T[9]} offen offset:{(2+i)*1024} sc1" for i in range(2)])
    for t in range(4, 7):
        E(gelu(t))

    E(f"s_lshr_b32 {T[0]}, {sC}, 3", f"s_and_b32 {T[1]}, {sC}, 7", f"s_lshl2_add_u32 {T[1]}, {T[1]}, {sW}",
      f"s_lshl_b32 {T[2]}, {T[0]}, 7", f"s_add_u32 {T[2]}, {T[2]}, {sFL}",
      f"s_lshl_b32 {T[3]}, {sW}, 4", f"s_add_u32 {T[3]}, {T[3]}, {T[2]}",
      "v_bfe_u32 v121, v1, 6, 1", "v_bfe_u32 v122, v1, 2, 4", "v_lshl_add_u32 v121, v121, 6, v122",
      f"s_mul_i32 {T[4]}, {T[0]}, {2*114688}", f"s_mul_i32 {T[5]}, {sW}, 28672", f"s_add_u32 {T[4]}, {T[4]}, {T[5]}",
      f"s_add_u32 {T[4]}, {T[4]}, {sGR}", f"s_add_u32 {T[4]}, {T[4]}, {G_H}",
      f"s_lshl_b32 {T[5]}, {T[0]}, 16", f"s_lshl_b32 {T[6]}, {T[1]}, 10", f"s_add_u32 {T[5]}, {T[5]}, {T[6]}",
      f"s_add_u32 {T[5]}, {T[5]}, {sGR}", f"s_add_u32 {T[5]}, {T[5]}, {G_X1}", f"s_add_u32 {T[6]}, {T[5]}, 0x8000",
      f"s_lshl2_add_u32 {T[7]}, {sG}, {T[0]}", f"s_lshl_b32 {T[7]}, {T[7]}, 16", f"s_lshl_b32 {T[9]}, {T[1]}, 5",
      f"s_add_u32 {T[7]}, {T[7]}, {T[9]}",
      f"s_lshl2_add_u32 {T[1]}, {T[1]}, {T[2]}",
      f"v_bfe_u32 {vXB}, v1, 4, 5", "v_lshrrev_b32 v122, 9, v1", "v_lshlrev_b32 v122, 4, v122", f"v_lshl_add_u32 {vXB}, {vXB}, 10, v122",
      f"s_lshl_b32 {T[9]}, {sW}, 11", f"v_add_u32 v31, {T[9]}, v1")
    E([f"v_xor_b32 v{27+p}, {p*2048}, v31" for p in (1, 2, 3)])
    E([f"v_add_u32 v{28+p}, {RING}, v{28+p}" for p in range(4)])
    publish(T[8], F_H)
    stamp()
    E([f"v_accvgpr_read_b32 v{88+i}, a{AB2+i}" for i in range(4)])
    for i in range(4):
        E(f"v_lshlrev_b32 v{80+2*i}, 16, v{88+i}", f"v_and_b32 v{81+2*i}, {sHI}, v{88+i}")
    E([f"v_mov_b32 v{40+i}, 0" for i in range(8)], [f"v_mov_b32 v{72+i}, 0" for i in range(8)])
    poll("v121", T[3], F_H)
    E(f"buffer_load_dwordx4 v[88:91], {vL}, {WS}, {T[5]} offen sc1 ;@r0", f"buffer_load_dwordx4 v[92:95], {vL}, {WS}, {T[6]} offen sc1 ;@r1")
    LR = [96+4*i for i in range(8)] + [12+4*i for i in range(4)]
    NL = len(LR)
    def hl(n):
        u, ks = divmod(n, 28)
        L = []
        if n and ks % 4 == 0:
            L.append(f"s_add_u32 {T[4]}, {T[4]}, {4096 if ks else 114688-6*4096}")
        L.append(f"buffer_load_dwordx4 {vr(LR[n%NL],4)}, {vL}, {WS}, {T[4]} offen offset:{(ks&3)*1024} sc1 ;@h{n}")
        return L
    for n in range(NL):
        E(hl(n))
    stamp()
    def resid(u):
        L = []
        for i in range(4):
            L += [f"v_lshlrev_b32 v{32+32*u+2*i}, 16, v{88+4*u+i}", f"v_and_b32 v{33+32*u+2*i}, {sHI}, v{88+4*u+i}"]
        L += [f"v_pk_add_f32 {vr(32+32*u+2*i,2)}, {vr(32+32*u+2*i,2)}, {vr(80+2*i,2)}" for i in range(4)]
        return L
    def red_w(u):
        return [f"ds_write_b128 v{27+p}, {vr(32+32*u+8*p+4*k,4)} offset:{(p-1)*8192+k*1024}" for p in (1, 2, 3) for k in range(2)]
    def red_r(u):
        return [f"ds_read_b128 {vr(32+32*u+8*p+4*k,4)}, v31 offset:{(p-1)*8192+k*1024} ;@rr{p}" for p in (1, 2, 3) for k in range(2)]
    def red_f(u):
        b = 32 + 32*u; L = []
        for p in (1, 2, 3):
            L += [f"WAIT lg=rr{p}"] + [f"v_pk_add_f32 {vr(b+2*i,2)}, {vr(b+2*i,2)}, {vr(b+8*p+2*i,2)}" for i in range(4)]
        L += [f"v_cvt_pk_bf16_f32 v{b+i}, v{b+2*i}, v{b+2*i+1}" for i in range(4)]
        L.append(f"buffer_store_dwordx4 {vr(b,4)}, {vXB}, {OUT}, {T[7]} offen")
        if u == 0:
            L.append(f"s_add_u32 {T[7]}, {T[7]}, 0x8000")
        return L
    E("WAIT vm=r0", resid(0))
    ex = {n: [] for n in range(56)}
    r1 = resid(1)
    for i in range(3):
        ex[1+i] = r1[4*i:4*i+4]
    w = red_w(0)
    for i in range(6):
        ex[30+i] = [w[i]]
    ex[37] = ["WAIT lg=0", "s_barrier"]
    w = red_r(0)
    for i in range(3):
        ex[38+i] = w[2*i:2*i+2]
    w = red_f(0)
    for i in range(5):
        ex[42+i] = w[5*i:5*i+5]
    ex[50] = ["s_barrier"]
    for n in range(56):
        u, ks = divmod(n, 28)
        E(f"WAIT vm=h{n}")
        for ct in range(2):
            d = vr(32+32*u+16*ct, 16)
            E(f"v_mfma_f32_32x32x16_bf16 {d}, {ar((ks*2+ct)*4,4)}, {vr(LR[n%NL],4)}, {'0' if (ks == 0 and ct) else d}")
            if ct == 0:
                E(ex[n])
        if n + NL < 56:
            E(hl(n + NL))
    E(red_w(1), "WAIT lg=0", "s_barrier", red_r(1), red_f(1))
    E(f"s_cmp_lg_u32 {sLAY}, 0", "s_cbranch_scc1 FINAL")
    E("v_bfe_u32 v126, v1, 2, 7", f"s_mov_b32 {T[5]}, {T[1]}", f"s_mov_b32 {T[6]}, {T[2]}",
      f"s_add_u32 {sKV}, {sKV}, 0x20000", f"s_add_u32 {sKVF}, {sKVF}, 1024")
    x_dma_setup()
    publish(T[5], F_X2)
    stamp()
    p1_addr()
    poll("v126", T[6], F_X2)
    x_dma(OUT, " sc1")
    E(f"s_mov_b32 {sLAY}, 1", f"s_add_u32 {sGR}, {sGR}, {8<<21}", f"s_add_u32 {sFL}, {sFL}, {8*2048}",
      "s_mov_b32 s12, s52", "s_mov_b32 s13, s53")
    p1(False)
    E("s_branch LAYER")
    E("FINAL:")
    if o["debug"]:
        E("s_waitcnt vmcnt(0)")
        stamp()
        E("s_memrealtime s[92:93]", "s_waitcnt lgkmcnt(0)", "v_writelane_b32 v0, s92, 1",
          f"s_lshl2_add_u32 {T[0]}, s2, {sW}", f"s_lshl_b32 {T[0]}, {T[0]}, 8", f"s_add_u32 {T[0]}, {T[0]}, {DBG}",
          f"v_writelane_b32 v0, {sBUD}, 62", f"v_writelane_b32 v0, {sSAFE}, 63",
          "v_lshrrev_b32 v2, 2, v1", f"buffer_store_dword v0, v2, {WS}, {T[0]} offen")
    E(f"s_or_b32 {T[0]}, s2, {sW}", f"s_cmp_lg_u32 {T[0]}, 0", "s_cbranch_scc1 KEXIT",
      "s_mov_b64 exec, 1", f"buffer_store_dword {vF}, off, {WS}, 0 sc1")
    E("KEXIT:", "s_endpgm")
    P.flush_ool()
    E("KEND:")
    body = P.finish()
    ref = open(f"cdna_kernels/{NAME}.s.ref").read().split("\n")
    head = []
    for l in ref:
        if l.startswith("; @launch"):
            l = f"; @launch grid=(256,1,1) block=(256,1,1) lds={LDS_BYTES}"
        head.append(l)
        if l.startswith(NAME + "_kernel:"):
            break
    tail = f""".section .rodata,"a"
.p2align 6
.amdhsa_kernel {NAME}_kernel
  .amdhsa_next_free_vgpr 512
  .amdhsa_next_free_sgpr 102
  .amdhsa_accum_offset 256
  .amdhsa_group_segment_fixed_size 0
  .amdhsa_kernarg_size 104
  .amdhsa_user_sgpr_count 2
  .amdhsa_user_sgpr_kernarg_segment_ptr 1
  .amdhsa_system_sgpr_workgroup_id_x 1
.end_amdhsa_kernel
"""
    return "\n".join(head) + "\n" + body + tail, P


if __name__ == "__main__":
    kw = {}
    out = f"cdna_kernels/{NAME}.s"
    for a in sys.argv[1:]:
        k, v = a.split("=")
        if k == "out":
            out = v
        else:
            kw[k] = int(v)
    s, P = gen(**kw)
    open(out, "w").write(s)
    print("lines", len(P.I), "auto-pad states", P.padded)
```

```python
import sys, struct, os
sys.path.insert(0, os.path.dirname(os.path.abspath(__file__)))
from asmlib import *

NAME = "interleave_layers__grouped_kv_mqa__dense_activation_gelu__prompt"
OPT = dict(debug=0, force_safe=0, force_slow=0, s2_load=1, s2_chk=5, pf_load=9, pf_chk=13)

def f2u(x):
    return struct.unpack("<I", struct.pack("<f", x))[0]

KVF0 = 0x1000; PREPF = 0x2000; GFL0 = 0x4000
CS1 = 0x10000; KV0 = 0x40000; WOF = 0x80000; WQF = 0x100000; W1F = 0x200000; W2F = 0x400000
X2 = 0x600000; GRP0 = 0x800000; DBG = 0x3000000
G_O = 0; G_X1 = 0x40000; G_ST = 0x80000; G_H = 0x100000
LSTEP = 8
F_O = 0; F_X1 = 512; F_H = 1024; F_X2 = 1536
RING = 114688; XT = RING; SLOT = 16512; TS = 2064
MISC = 147968
L_MU = MISC; L_CSQ = MISC + 256; L_TB = MISC + 1024; L_KVP = MISC + 2048; L_CKP = MISC + 6144
LDS_BYTES = 163840
WS = "s[4:7]"; XIN = "s[8:11]"; OUT = "s[12:15]"; SA = "s[16:19]"; SB = "s[20:23]"; SC = "s[24:27]"
sF, sBUD, sLAY, sSAFE = "s28", "s29", "s30", "s31"
sG, sC, sW, sRB, sCQ, sGR, sFL, sKV, sKVF, sXCC, sONE = [f"s{i}" for i in range(58, 69)]
T = [f"s{i}" for i in range(70, 80)]
sA1, sA2a, sA2b, sAO, sCH, sM0K, sM0W = [f"s{i}" for i in range(80, 87)]
sPD = "s87"
sGC = "s[88:89]"
sST = "s90"; sHI = "s91"
sW0 = "s[94:95]"
vL, vIDX, vK, vVlo, vVhi, vF, vXB = "v1", "v2", "v3", "v4", "v5", "v6", "v7"
CK = 8; RES = 12; Q = 20; R = 128
AKV = 224; AB2 = 240


def gen(**kw):
    o = dict(OPT); o.update(kw)
    P = Prog(); E = P

    def stamp():
        if not o["debug"]:
            return
        E("s_memtime s[92:93]", "s_waitcnt lgkmcnt(0)", f"s_mov_b32 m0, {sST}", "v_writelane_b32 v0, s92, m0",
          f"s_add_u32 {sST}, {sST}, 1")

    def poll(vaddr, soff, imm=0, vt="v120", rng=False, inv=True):
        lp = P.lab("POLL"); dn = P.lab("PDONE"); fl = P.lab("PFAIL")
        E(f"{lp}:", f"buffer_load_dword {vt}, {vaddr}, {WS}, {soff} offen offset:{imm} sc1",
          f"s_sub_u32 {sBUD}, {sBUD}, 1", f"s_cbranch_scc1 {fl}", "s_waitcnt vmcnt(0)")
        if rng:
            E(f"v_sub_u32 {vt}, {vt}, {vF}", f"v_cmp_lt_u32 vcc, 15, {vt}")
        else:
            E(f"v_cmp_ne_u32 vcc, {vt}, {vF}")
        E(f"s_cbranch_vccnz {lp}", f"{dn}:")
        P.out_of_line(f"{fl}:", f"s_mov_b32 {sBUD}, 0", "s_waitcnt vmcnt(0)", f"s_branch {dn}")
        if inv:
            a = P.lab("INV"); b = P.lab("INVD")
            E(f"s_cmp_lg_u32 {sSAFE}, 0", f"s_cbranch_scc1 {a}", f"{b}:")
            P.out_of_line(f"{a}:", "buffer_inv sc1", "s_waitcnt vmcnt(0)", f"s_branch {b}")

    def publish(soff, imm):
        a = P.lab("PUBS"); b = P.lab("PUBD")
        E(f"s_cmp_lg_u32 {sSAFE}, 0", "s_mov_b64 exec, 1", "s_waitcnt vmcnt(0)", f"s_cbranch_scc1 {a}",
          f"buffer_store_dword {vF}, off, {WS}, {soff} offset:{imm}", f"{b}:", "s_mov_b64 exec, -1")
        P.out_of_line(f"{a}:", "buffer_wbl2 sc1", "s_waitcnt vmcnt(0)",
                      f"buffer_store_dword {vF}, off, {WS}, {soff} offset:{imm} sc1", f"s_branch {b}")

    def srd(base, lo, size):
        E(f"s_mov_b32 s{base}, s{lo}", f"s_mov_b32 s{base+1}, s{lo+1}", f"s_mov_b32 s{base+2}, {size}",
          f"s_mov_b32 s{base+3}, 0x20000")

    def x_dma(SRD, sc):
        for i in range(8):
            if i == 4:
                E(f"s_add_u32 {T[0]}, {T[0]}, 4096")
            E(f"s_add_u32 m0, {T[1]}, {(i>>2)*4160 + (i&3)*16}", "s_nop 0",
              f"buffer_load_dwordx4 {vL}, {SRD}, {T[0]} offen offset:{(i&3)*1024}{sc} lds ;@x")

    def x_dma_setup():
        E(f"s_lshl_b32 {T[0]}, {sG}, 3", f"s_add_u32 {T[0]}, {T[0]}, {sRB}", f"s_lshl2_add_u32 {T[0]}, {T[0]}, {sW}",
          f"s_lshl_b32 {T[0]}, {T[0]}, 13",
          f"s_mul_i32 {T[1]}, {sW}, 8320", f"s_add_u32 {T[1]}, {T[1]}, {XT}")

    E("s_cmp_ge_u32 s2, 256", "s_cbranch_scc1 KEXIT")
    E("s_load_dwordx16 s[32:47], s[0:1], 0", "s_load_dwordx8 s[48:55], s[0:1], 64", "s_load_dwordx2 s[56:57], s[0:1], 96")
    E("s_getpc_b64 s[70:71]", "PCREF:")
    E("v_lshrrev_b32 v2, 6, v0", "v_lshlrev_b32 v3, 7, v0", f"v_readfirstlane_b32 {sW}, v2",
      "s_mov_b32 s72, KEND-PCREF-4")
    for i in range(2):
        E(f"v_add_u32 v4, {i*32768}, v3", "v_min_u32 v4, s72, v4", "v_mov_b32 v5, s71",
          "v_add_co_u32 v4, vcc, s70, v4", "v_addc_co_u32 v5, vcc, 0, v5, vcc",
          f"global_load_dword v{254+i}, v[4:5], off")
    E("v_and_b32 v1, 63, v0", "v_lshlrev_b32 v1, 4, v1")
    if o["debug"]:
        E("v_mov_b32 v0, 0", f"s_mov_b32 {sST}, 2", "s_memrealtime s[92:93]", "s_waitcnt lgkmcnt(0)", "v_writelane_b32 v0, s92, 0")
        stamp()
    E(f"s_and_b32 {sG}, s2, 7", f"s_lshr_b32 {sC}, s2, 3", f"s_lshr_b32 {sRB}, s2, 5", f"s_and_b32 {sCQ}, {sC}, 3")
    x_dma_setup()
    E(f"s_mul_i32 {T[2]}, {sW}, 28672")
    E(f"s_lshl_b32 {T[3]}, {sW}, 12")
    E("v_lshrrev_b32 v32, 6, v1", "v_lshlrev_b32 v32, 10, v32", "v_and_or_b32 v32, v1, 48, v32")
    E("s_waitcnt lgkmcnt(0)")
    E(f"s_load_dword {sF}, s[56:57], 0")
    srd(8, 32, 0x200000)
    x_dma(XIN, "")
    E(f"s_bitcmp1_b32 {sCQ}, 0", "s_cselect_b32 s20, s38, s36", "s_cselect_b32 s21, s39, s37",
      "s_mov_b32 s22, 16384", "s_mov_b32 s23, 0x20000", f"s_mov_b32 m0, {T[2]}")
    srd(16, 34, 0x80000)
    for i in range(4):
        E(f"buffer_load_dwordx4 {vL}, {SB}, {T[3]} offen offset:{i*1024} lds ;@wkv")
    E("v_lshrrev_b32 v35, 9, v1", "v_lshlrev_b32 v33, 9, v35",
      "v_bfe_u32 v35, v1, 6, 2", "v_lshl_add_u32 v33, v35, 6, v33",
      "v_bfe_u32 v35, v1, 8, 1", "v_lshl_add_u32 v33, v35, 5, v33",
      "v_bfe_u32 v35, v1, 4, 1", "v_lshl_add_u32 v33, v35, 4, v33",
      "v_bfe_u32 v35, v1, 5, 1", "v_lshl_add_u32 v33, v35, 3, v33",
      f"v_add_u32 v33, {T[2]}, v33",
      "v_and_b32 v34, 0x300, v1", "v_bfe_u32 v35, v1, 4, 4", "v_lshl_add_u32 v34, v35, 3, v34",
      f"v_add_u32 v34, {T[2]}, v34")
    E("s_cmp_lt_u32 s2, 112", "s_cbranch_scc1 PJ1")
    E("s_cmp_lt_u32 s2, 224", "s_cselect_b32 s24, s48, s40", "s_cselect_b32 s25, s49, s41",
      "s_cselect_b32 s26, 0x1c0000, s18", f"s_cselect_b32 {T[7]}, 0x70, 32", f"s_cselect_b32 {T[8]}, 0, 0x70",
      f"s_cselect_b32 {sPD}, {W2F - WOF}, 0", f"s_add_u32 {sPD}, {sPD}, {WOF}",
      f"s_sub_u32 {T[8]}, s2, {T[8]}", f"s_sub_u32 {T[8]}, {T[8]}, 0x70",
      f"s_and_b32 {T[9]}, {T[8]}, 7", f"s_lshl_b32 {T[9]}, {T[9]}, 1", f"s_and_b32 {T[4]}, {sW}, 1",
      f"s_add_u32 {T[9]}, {T[9]}, {T[4]}",
      f"s_lshr_b32 {T[8]}, {T[8]}, 3", f"s_lshl_b32 {T[8]}, {T[8]}, 1", f"s_lshr_b32 {T[4]}, {sW}, 1",
      f"s_add_u32 {T[8]}, {T[8]}, {T[4]}",
      f"s_lshl_b32 {T[4]}, {T[8]}, 16", f"s_lshl_b32 {T[5]}, {T[9]}, 6", f"s_add_u32 {T[4]}, {T[4]}, {T[5]}",
      f"s_mul_i32 {T[9]}, {T[9]}, {T[7]}", f"s_lshl2_add_u32 {T[9]}, {T[8]}, {T[9]}", f"s_lshl_b32 {T[9]}, {T[9]}, 10",
      f"s_add_u32 {sPD}, {sPD}, {T[9]}", f"s_mov_b32 {T[5]}, 16384", f"s_mov_b32 {T[6]}, 0x20000000",
      "v_mov_b32 v36, v32", "v_mov_b32 v28, v33", "v_add_u32 v29, 256, v33", "s_branch PJD")
    E("PJ1:", "s_mov_b32 s24, s44", "s_mov_b32 s25, s45", "s_mov_b32 s26, 0x1c0000",
      f"s_and_b32 {T[8]}, s2, 3", f"s_and_b32 {T[9]}, s2, 0xfc", f"s_add_u32 {T[9]}, {T[9]}, {sW}",
      f"s_mul_i32 {T[4]}, {T[8]}, {128*3584}", f"s_lshl_b32 {T[5]}, {T[9]}, 5", f"s_add_u32 {T[4]}, {T[4]}, {T[5]}",
      f"s_mul_i32 {T[6]}, {T[8]}, 7168", f"s_lshl1_add_u32 {T[6]}, {T[5]}, {T[6]}", f"s_add_u32 {T[6]}, {T[6]}, {CS1}",
      f"s_lshl2_add_u32 {T[9]}, {T[9]}, {T[8]}", f"s_lshl_b32 {T[9]}, {T[9]}, 12", f"s_add_u32 {sPD}, {T[9]}, {W1F}",
      f"s_mov_b32 {T[5]}, {32*3584}",
      "v_lshrrev_b32 v36, 5, v1", "v_mul_u32_u24 v36, 3584, v36", "v_and_or_b32 v36, v1, 16, v36",
      "v_mov_b32 v28, v34", "v_add_u32 v29, 128, v34")
    E("PJD:", "s_mov_b32 s27, 0x20000")
    for i in range(4):
        E(f"s_add_u32 m0, {T[2]}, {(4+i)*1024}", "s_nop 0",
          f"buffer_load_dwordx4 v36, {SC}, {T[4]} offen lds ;@prep", f"s_add_u32 {T[4]}, {T[4]}, {T[5]}")
    E(f"s_lshl2_add_u32 {T[3]}, {sCQ}, {sW}", f"s_lshl_b32 {T[3]}, {T[3]}, 6")
    def wq_slot(ks):
        return 8 + ks if ks < 20 else (ks - 20 if ks < 28 else ks - 20)
    def wq_dma(ks):
        E(f"s_add_u32 m0, {T[2]}, {wq_slot(ks)*1024}", "s_nop 0",
          f"buffer_load_dwordx4 v30, {SA}, {T[3]} offen lds ;@wq{ks}", f"s_add_u32 {T[3]}, {T[3]}, 16384")
    E("v_mov_b32 v30, v32", "v_mov_b32 v31, v33")
    for ks in range(20):
        wq_dma(ks)
    srd(4, 56, 0x10000000)
    E(f"s_add_u32 s12, s56, {X2}", "s_addc_u32 s13, s57, 0", "s_mov_b32 s14, 0x200000", "s_mov_b32 s15, 0x20000")
    srd(20, 50, 1024)
    srd(24, 46, 3584)
    E(f"s_and_b32 {T[4]}, {sC}, 7", f"s_lshl2_add_u32 {T[4]}, {T[4]}, {sW}", f"s_lshl_b32 {T[4]}, {T[4]}, 5",
      "v_lshrrev_b32 v35, 9, v1", "v_lshlrev_b32 v35, 4, v35",
      f"buffer_load_dwordx4 {ar(AB2,4)}, v35, {SB}, {T[4]} offen ;@b2")
    E(f"s_getreg_b32 {sXCC}, hwreg(HW_REG_XCC_ID, 0, 4)", f"s_mov_b32 {sONE}, 0x3f803f80", f"s_mov_b32 {sBUD}, 0x40000",
      f"s_mov_b32 {sLAY}, 0", f"s_mov_b32 {sSAFE}, 0", f"s_mov_b32 {sHI}, 0xffff0000",
      f"s_lshl_b32 {sGR}, {sG}, 21", f"s_add_u32 {sGR}, {sGR}, {GRP0}",
      f"s_lshl_b32 {sFL}, {sG}, 11", f"s_add_u32 {sFL}, {sFL}, {GFL0}",
      f"s_mov_b32 {sKV}, {KV0}", f"s_mov_b32 {sKVF}, {KVF0}",
      f"s_mul_i32 {sM0K}, {sW}, {2*TS}", f"s_add_u32 {sM0K}, {sM0K}, {RING}",
      f"s_mov_b32 s88, {f2u(-0.7978845608028654*2*1.4426950408889634*0.044715)}",
      f"s_mov_b32 s89, {f2u(-0.7978845608028654*2*1.4426950408889634)}",
      f"s_cmp_eq_u32 {sW}, 0", "s_cselect_b32 s94, 1, 0", "s_mov_b32 s95, 0")
    E(f"v_mov_b32 {vIDX}, 0xdddddddd", f"v_add_u32 {vK}, {RING}, v1",
      "v_lshrrev_b32 v35, 9, v1", "v_and_b32 v4, 0xf0, v1", "v_lshl_add_u32 v4, v35, 8, v4",
      f"v_add_u32 v4, {RING+1024}, v4", "v_add_u32 v5, 512, v4", "v_and_b32 v35, 0x100, v1", "v_cmp_ne_u32 vcc, 0, v35",
      f"v_mov_b32 v35, {RING+2048}", "v_cndmask_b32 v4, v4, v35, vcc", "v_cndmask_b32 v5, v5, v35, vcc")
    E("s_waitcnt lgkmcnt(0)", f"s_add_u32 {sF}, {sF}, 0x9e3779b9", f"v_mov_b32 {vF}, {sF}")

    def p1_addr():
        E(f"s_mul_i32 {T[7]}, {sW}, 8320", f"s_add_u32 {T[7]}, {T[7]}, {XT}",
          "v_lshrrev_b32 v96, 7, v1", "v_mul_u32_u24 v112, 1040, v96", "v_and_b32 v97, 0x70, v1",
          f"v_add3_u32 v112, v112, v97, {T[7]}",
          f"s_lshl_b32 {T[7]}, {sW}, 5", f"s_add_u32 {T[7]}, {T[7]}, {L_MU}", f"v_lshl_add_u32 v114, v96, 2, {T[7]}",
          f"s_lshr_b32 {T[8]}, {sCQ}, 1",
          f"s_mul_i32 {T[7]}, {T[8]}, {16*1040}", f"s_lshl_b32 {T[9]}, {sW}, 8", f"s_add_u32 {T[7]}, {T[7]}, {T[9]}",
          f"s_add_u32 {T[7]}, {T[7]}, {XT}",
          "v_bfe_u32 v96, v1, 4, 4", "v_lshrrev_b32 v97, 8, v1",
          "v_mul_u32_u24 v113, 1040, v96", "v_lshl_add_u32 v113, v97, 4, v113", f"v_add_u32 v113, {T[7]}, v113",
          f"s_lshl_b32 {T[7]}, {sW}, 10", f"s_add_u32 {T[7]}, {T[7]}, {L_KVP}", f"v_add_u32 v115, {T[7]}, v1",
          f"s_bitcmp1_b32 {sCQ}, 0", "s_cselect_b64 vcc, -1, 0", f"s_cselect_b32 {T[9]}, 4, 0",
          f"s_lshl_b32 {T[7]}, {T[8]}, 6", f"s_add_u32 {T[7]}, {T[7]}, {L_MU}",
          "v_lshlrev_b32 v98, 2, v97", "v_cndmask_b32 v98, v96, v98, vcc", f"v_lshl_add_u32 v116, v98, 2, {T[7]}",
          f"v_add_u32 v117, {T[9]}, v116", f"v_add_u32 v118, {T[9]}, v117", f"v_add_u32 v119, {T[9]}, v118",
          "v_lshrrev_b32 v100, 1, v97", "v_and_b32 v101, 1, v97", "v_lshlrev_b32 v101, 3, v101",
          "v_lshl_add_u32 v98, v100, 9, v101", "v_lshl_add_u32 v98, v96, 4, v98",
          f"s_lshl_b32 {T[7]}, {T[8]}, 8", f"v_add_u32 v98, {T[7]}, v98",
          "v_lshl_add_u32 v99, v100, 8, v101", "v_and_b32 v100, 0x30, v1", "v_add_u32 v99, v99, v100",
          "v_bfe_u32 v100, v1, 6, 1", "v_lshl_add_u32 v99, v100, 7, v99",
          "v_bfe_u32 v100, v1, 7, 1", "v_lshl_add_u32 v99, v100, 6, v99",
          f"s_lshl_b32 {T[7]}, {T[8]}, 9", f"s_add_u32 {T[7]}, {T[7]}, 1024", f"v_add_u32 v99, {T[7]}, v99",
          "v_cndmask_b32 v121, v98, v99, vcc",
          "v_bfe_u32 v96, v1, 4, 5", "v_lshrrev_b32 v97, 9, v1",
          f"v_mul_u32_u24 {vXB}, 1040, v96", f"v_lshl_add_u32 {vXB}, v97, 4, {vXB}", f"v_add_u32 {vXB}, {XT}, {vXB}",
          f"s_lshl2_add_u32 {T[7]}, {sCQ}, {sW}", f"s_lshl_b32 {T[7]}, {T[7]}, 6", f"v_add_u32 v122, {T[7]}, {vXB}",
          "v_lshlrev_b32 v96, 2, v96", f"v_add_u32 v123, {L_MU}, v96",
          f"s_lshl_b32 {T[7]}, {sW}, 7", f"s_add_u32 {T[7]}, {T[7]}, {L_CSQ}",
          f"v_add_u32 v124, {T[7]}, v96", f"v_lshl_add_u32 v125, v97, 4, {T[7]}",
          f"s_lshl_b32 {T[8]}, {sG}, 3", f"s_add_u32 {T[8]}, {T[8]}, {sRB}", f"s_lshl_b32 {T[8]}, {T[8]}, 11",
          f"s_add_u32 {T[8]}, {T[8]}, {sKV}",
          f"s_lshl_b32 {T[9]}, {sG}, 5", f"s_add_u32 {T[9]}, {T[9]}, {sC}", f"s_lshl2_add_u32 {T[9]}, {T[9]}, {sKVF}")
        E([f"v_mov_b32 v{84+i}, 0" for i in range(4)])

    def p1(first):
        if first:
            E("v_mov_b32 v126, v34")
            E([f"v_mov_b32 v{108+i}, {sONE}" for i in range(4)])
        E("WAIT vm=x")
        stamp()
        E([f"ds_read_b128 {vr(32+4*i,4)}, v112 offset:{i*128} ;@st{i}" for i in range(8)])
        if first:
            E("WAIT vm=wkv")
            for ks in range(4):
                E(f"ds_read_b64_tr_b16 {ar(AKV+4*ks,2)}, v126 offset:{ks*1024}",
                  f"ds_read_b64_tr_b16 {ar(AKV+4*ks+2,2)}, v126 offset:{ks*1024+128}")
        E("s_barrier")
        E([f"ds_read_b128 {vr(64+4*i,4)}, v113 offset:{i*64} ;@kx" for i in range(4)])
        def dots(i):
            L = []
            for r in range(4):
                x = 32 + 4*i + r
                L += [f"v_dot2c_f32_bf16 v{84+(r&1)}, {sONE}, v{x}", f"v_dot2c_f32_bf16 v{86+(r&1)}, v{x}, v{x}"]
            return L
        for i in range(4):
            E(f"WAIT lg=st{i}", dots(i))
        E(f"s_bitcmp1_b32 {sCQ}, 0", "WAIT lg=0")
        lv = P.lab("KVV"); ld = P.lab("KVD")
        E(f"s_cbranch_scc1 {lv}")
        def kvm(isv_):
            L = []
            for ks in range(4):
                w = ar(AKV+4*ks, 4); x = vr(64+4*ks, 4); on = vr(108, 4)
                a, b = (x, w) if isv_ else (w, x)
                L.append(f"v_mfma_f32_16x16x32_bf16 v[80:83], {a}, {b}, {'0' if ks == 0 else 'v[80:83]'}")
                if first:
                    a, b = (on, w) if isv_ else (w, on)
                    L.append(f"v_mfma_f32_16x16x32_bf16 {vr(CK,4)}, {a}, {b}, {'0' if ks == 0 else vr(CK,4)}")
            return L
        E(kvm(False), f"{ld}:")
        P.out_of_line(f"{lv}:", kvm(True), f"s_branch {ld}")
        for i in range(4, 8):
            E(dots(i))
        E("ds_write_b128 v115, v[80:83]")
        if first:
            E(f"ds_write_b128 v115, {vr(CK,4)} offset:{L_CKP-L_KVP}")
        E("v_add_f32 v84, v84, v85", "v_add_f32 v86, v86, v87")
        for d in ("quad_perm:[1,0,3,2]", "quad_perm:[2,3,0,1]", "row_half_mirror"):
            E(f"v_add_f32_dpp v84, v84, v84 {d} row_mask:0xf bank_mask:0xf",
              f"v_add_f32_dpp v86, v86, v86 {d} row_mask:0xf bank_mask:0xf")
        E(f"v_mul_f32 v84, {f2u(1/512)}, v84", f"v_mul_f32 v86, {f2u(1/512)}, v86",
          "v_fma_f32 v86, -v84, v84, v86", "v_max_f32 v86, 0, v86", f"v_add_f32 v86, {f2u(1e-5)}, v86",
          "v_rsq_f32 v86, v86", "s_nop 0", "ds_write2_b32 v114, v84, v86 offset1:32",
          f"s_cmp_lg_u32 {sW}, 0", "WAIT lg=0", "s_barrier")
        lk = P.lab("KVSKIP")
        E(f"s_cbranch_scc1 {lk}")
        E([f"ds_read_b128 {vr(64+4*i,4)}, v115 offset:{1024*(i+1)} ;@opt" for i in range(3)])
        if first:
            E([f"ds_read_b128 {vr(96+4*i,4)}, v115 offset:{L_CKP-L_KVP+1024*(i+1)} ;@opt" for i in range(3)])
        E([f"ds_read2_b32 {vr(88+2*i,2)}, v{116+i} offset1:32 ;@opt" for i in range(4)])
        E("WAIT lg=4")
        for i in range(3):
            E(f"v_pk_add_f32 v[80:81], v[80:81], {vr(64+4*i,2)}", f"v_pk_add_f32 v[82:83], v[82:83], {vr(66+4*i,2)}")
        if first:
            for i in range(3):
                E(f"v_pk_add_f32 {vr(CK,2)}, {vr(CK,2)}, {vr(96+4*i,2)}", f"v_pk_add_f32 {vr(CK+2,2)}, {vr(CK+2,2)}, {vr(98+4*i,2)}")
        E("WAIT lg=0")
        E([f"v_fma_f32 v{80+i}, -v{88+2*i}, v{CK+i}, v{80+i}" for i in range(4)])
        E([f"v_mul_f32 v{80+i}, v{80+i}, v{89+2*i}" for i in range(4)])
        E("v_cvt_pk_bf16_f32 v80, v80, v81", "v_cvt_pk_bf16_f32 v81, v82, v83",
          f"buffer_store_dwordx2 v[80:81], v121, {WS}, {T[8]} offen sc1 ;@opt kvst")
        E(f"{lk}:")
        stamp()
        def trq(ks):
            return [f"ds_read_b64_tr_b16 {vr(R+4*ks,2)}, v31 offset:{wq_slot(ks)*1024}",
                    f"ds_read_b64_tr_b16 {vr(R+4*ks+2,2)}, v31 offset:{wq_slot(ks)*1024+256}"]
        if first:
            for ks in range(20, 24):
                wq_dma(ks)
            E("WAIT vm=prep")
            for i in range(4):
                E(f"ds_read_b64_tr_b16 {vr(64+4*i,2)}, v28 offset:{(4+i)*1024}",
                  f"ds_read_b64_tr_b16 {vr(66+4*i,2)}, v29 offset:{(4+i)*1024}")
            E("WAIT vm=wq3")
            for ks in range(4):
                E(trq(ks))
            E("WAIT lg=0")
            for ks in range(24, 32):
                wq_dma(ks)
            for i in range(4):
                E(f"v_mfma_f32_16x16x32_bf16 v[96:99], {vr(64+4*i,4)}, v[108:111], {'0' if i == 0 else 'v[96:99]'}",
                  f"buffer_store_dwordx4 {vr(64+4*i,4)}, {vL}, {WS}, {sPD} offen offset:{i*1024} sc1")
            E("v_lshrrev_b32 v100, 8, v1", "v_lshlrev_b32 v100, 4, v100",
              f"buffer_store_dwordx4 v[96:99], v100, {WS}, {T[6]} offen sc1")
        E("v_mov_b32 v84, 0", "v_mov_b32 v85, 0")
        D = 4 if first else 6
        def rd(ks):
            L = []
            if first and ks >= 4:
                if ks % 4 == 0:
                    L.append(f"WAIT vm=wq{ks+3}")
                L += trq(ks)
            L.append(f"ds_read_b128 {vr(48+4*(ks%8),4)}, {vXB} offset:{ks*32} ;@qb{ks}")
            return L
        def kvflag():
            E(f"s_add_u32 {T[7]}, {sF}, {sXCC}", f"v_mov_b32 v86, {T[7]}", f"s_mov_b64 exec, {sW0}", "WAIT vm=kvst",
              f"buffer_store_dword v86, off, {WS}, {T[9]} sc1 ;@opt", "s_mov_b64 exec, -1")
        for ks in range(D):
            E(rd(ks))
        for ks in range(32):
            E(f"WAIT lg=qb{ks}")
            E(f"v_mfma_f32_32x32x16_bf16 v[32:47], {vr(R+4*ks,4)}, {vr(48+4*(ks%8),4)}, {'0' if ks == 0 else 'v[32:47]'}")
            if first and ks + D == 20:
                kvflag()
            if ks + D < 32:
                E(rd(ks + D))
            elif ks + D == 32:
                E(f"ds_read_b128 {vr(RES,4)}, v122", f"ds_read_b128 {vr(RES+4,4)}, v122 offset:32",
                  "ds_read2_b32 v[88:89], v123 offset1:32")
            E([f"v_dot2c_f32_bf16 v{84+(r&1)}, {sONE}, v{R+4*ks+r}" for r in range(4)])
        E("v_add_f32 v84, v84, v85", "v_mov_b32 v85, v84", "v_permlane32_swap_b32 v84, v85", "v_add_f32 v84, v84, v85",
          "ds_write_b32 v124, v84")
        E([f"ds_read_b128 {vr(96+4*a,4)}, v125 offset:{a*32}" for a in range(4)])
        if first:
            E(f"s_lshl_b32 {T[4]}, {sG}, 3", f"s_add_u32 {T[4]}, {T[4]}, {sRB}",
              f"s_lshl2_add_u32 {T[5]}, {sCQ}, {sW}", f"s_lshl_b32 {T[5]}, {T[5]}, 5", f"s_add_u32 {T[5]}, {T[5]}, {T[4]}",
              f"s_lshl_b32 {T[5]}, {T[5]}, 10", f"s_add_u32 {T[5]}, {T[5]}, {WQF}",
              f"s_cmp_lt_u32 {T[4]}, 32", f"s_cselect_b32 {T[5]}, {T[5]}, 0x20000000",
              f"s_and_b32 {T[4]}, {T[4]}, 31", f"s_lshl_b32 {T[4]}, {T[4]}, 2",
              f"s_set_gpr_idx_on {T[4]}, gpr_idx(SRC0)")
            E([f"v_mov_b32 v{64+i}, v{R+i}" for i in range(4)])
            E("s_set_gpr_idx_off", f"buffer_store_dwordx4 v[64:67], {vL}, {WS}, {T[5]} offen sc1")
        else:
            kvflag()
        E("WAIT lg=0", f"v_mul_f32 v89, {f2u(0.25*1.4426950408889634)}, v89")
        for i in range(8):
            E(f"v_pk_fma_f32 {vr(32+2*i,2)}, {vr(96+2*i,2)}, v[88:89], {vr(32+2*i,2)} op_sel_hi:[1,0,1] neg_lo:[0,1,0] neg_hi:[0,1,0]")
        for i in range(8):
            E(f"v_pk_mul_f32 {vr(32+2*i,2)}, {vr(32+2*i,2)}, v[88:89] op_sel:[0,1]")
        for i in range(8):
            E(f"v_cvt_pk_bf16_f32 v{Q+i}, v{32+2*i}, v{33+2*i}")

    p1_addr()
    p1(True)

    S = [32, 48]; O = [64, 80]; KF = [96, 100]; VL = [104, 108]; VH = [112, 116]
    E("LAYER:")
    stamp()
    E("s_barrier")
    E("v_bfe_u32 v96, v1, 4, 4", f"v_mul_u32_u24 v96, {TS}, v96", f"v_add_u32 v96, {RING+2048}, v96")
    E([f"v_mov_b32 v{100+i}, {sONE}" for i in range(4)])
    E("ds_write_b128 v96, v[100:103]")
    E([f"v_mov_b32 v{64+i}, 0" for i in range(32)])
    E(f"s_lshl_b32 {T[0]}, {sW}, 12", f"s_add_u32 {T[0]}, {T[0]}, {sKV}", f"v_add_u32 v126, {T[0]}, v1",
      f"s_lshl_b32 {sCH}, {sG}, 14",
      f"s_and_b32 {T[0]}, {sW}, 1", f"s_lshl_b32 {T[0]}, {T[0]}, 8", f"v_xor_b32 v124, {T[0]}, v1",
      f"s_and_b32 {T[1]}, {sC}, 15", f"s_mul_i32 {sM0W}, {sW}, 28672", f"s_mul_i32 {sA1}, {T[1]}, 114688",
      f"s_add_u32 {sA1}, {sA1}, {sM0W}", f"s_add_u32 {sA1}, {sA1}, {W1F}",
      f"s_mul_i32 {T[1]}, {T[1]}, 112", f"s_lshl_b32 {T[0]}, {sW}, 5", f"s_add_u32 {T[1]}, {T[1]}, {T[0]}",
      "v_bfe_u32 v125, v1, 4, 5", f"v_add_u32 v125, {T[1]}, v125", "v_lshlrev_b32 v127, 2, v125", "v_lshlrev_b32 v125, 1, v125",
      f"s_and_b32 {T[0]}, {sC}, 7", f"s_lshl_b32 {T[0]}, {T[0]}, 1", f"s_lshr_b32 {T[1]}, {sW}, 1", f"s_add_u32 {T[0]}, {T[0]}, {T[1]}",
      f"s_xor_b32 {T[1]}, {T[0]}, 1", f"s_mul_i32 {sA2a}, {T[0]}, 114688", f"s_mul_i32 {sA2b}, {T[1]}, 114688",
      f"s_add_u32 {T[0]}, {sM0W}, {W2F}", f"s_add_u32 {sA2a}, {sA2a}, {T[0]}", f"s_add_u32 {sA2b}, {sA2b}, {T[0]}",
      f"s_lshl2_add_u32 {sAO}, {sCQ}, {sW}", f"s_lshl_b32 {sAO}, {sAO}, 15", f"s_add_u32 {sAO}, {sAO}, {WOF}",
      f"s_lshl_b32 {T[0]}, {sG}, 7", f"s_add_u32 {T[0]}, {T[0]}, {sKVF}", "v_bfe_u32 v121, v1, 2, 7",
      f"s_lshl_b32 {T[2]}, s2, 2", f"s_add_u32 {T[2]}, {T[2]}, {PREPF}", f"s_mov_b32 {T[3]}, {PREPF}")
    poll("v121", T[0], rng=True, inv=False)
    def kv_dma(slot):
        L = []
        for k in range(4):
            pre = []
            if k % 2 == 0:
                pre = [f"s_add_u32 m0, {sM0K}, {slot*SLOT + (k>>1)*16}"]
            L.append((pre, f"buffer_load_dwordx4 v126, {WS}, {sCH} offen offset:{k*1024} sc1 lds ;@kv"))
        return L
    adv = [f"s_add_u32 {sCH}, {sCH}, 0x4000", f"s_and_b32 {sCH}, {sCH}, 0x1ffff"]
    for pre, x in kv_dma(0):
        E(pre, x)
    E(adv)
    E(f"v_cmp_ne_u32 vcc, {sXCC}, v120", "s_cmp_lg_u64 vcc, 0", f"s_cselect_b32 {sSAFE}, 1, {o['force_safe']}")
    stamp()
    E("WAIT vm=0 lg=0", "s_barrier")
    E(f"ds_read_b128 {vr(KF[0],4)}, {vK}", f"ds_read_b128 {vr(VL[0],4)}, {vVlo}", f"ds_read_b128 {vr(VH[0],4)}, {vVhi}")
    E(f"s_mov_b64 exec, {sW0}", f"buffer_store_dword {vF}, off, {WS}, {T[2]} sc1 ;@opt", "s_mov_b64 exec, -1")
    E("WAIT lg=0")
    stamp()
    def QK(t):
        return f"v_mfma_f32_32x32x16_bf16 {vr(S[t&1],16)}, {vr(KF[(t>>1)&1],4)}, {vr(Q+4*(t&1),4)}, 0"
    def PV(t, hi):
        v = (VH if hi else VL)[(t>>1)&1]
        return f"v_smfmac_f32_32x32x32_bf16 {vr(O[t&1],16)}, {vr(v,4)}, {vr(S[t&1]+8*hi,8)}, {vIDX}"
    W = []
    for i in range(28):
        pre = []
        if i % 4 == 0 and i:
            pre += [f"s_add_u32 {sA1}, {sA1}, 4096", f"s_add_u32 {sM0W}, {sM0W}, 4096"]
        W.append((pre, f"buffer_load_dwordx4 {vL}, {WS}, {sA1} offen offset:{(i&3)*1024} sc1 lds", "m0w"))
    for i in range(32):
        pre = [f"s_add_u32 {sAO}, {sAO}, 4096"] if (i % 4 == 0 and i) else []
        W.append((pre, f"buffer_load_dwordx4 {vr(R+4*i,4)}, {vL}, {WS}, {sAO} offen offset:{(i&3)*1024} sc1", None))
    for i in range(4):
        W.append(([f"s_mov_b32 {T[4]}, {CS1+i*7168}"], f"buffer_load_dword v{28+i}, v127, {WS}, {T[4]} offen sc1", None))
    W.append(([], f"buffer_load_ushort v127, v125, {SC}, 0 offen", None))
    for ct in range(2):
        s = sA2b if ct else sA2a
        for i in range(28):
            pre = [f"s_add_u32 {s}, {s}, 4096"] if (i % 4 == 0 and i) else []
            W.append((pre, f"buffer_load_dwordx4 {ar((i*2+ct)*4,4)}, v124, {WS}, {s} offen offset:{(i&3)*1024} sc1", None))
    pos = {(t, p): [] for t in range(128) for p in range(3)}
    def prevpos(t, p):
        return (t, p-1) if p else (t-1, 2)
    used = set()
    m0state = [None]
    def place(t, p, pre, ins, m0=None):
        pre = list(pre)
        if m0 == "m0w" and (m0state[0] != "w" or pre):
            pre.append(f"s_mov_b32 m0, {sM0W}"); m0state[0] = "w"
        pos[prevpos(t, p)] += pre
        pos[(t, p)].append(ins)
        used.add((t, p))
    def check(regs4, limit, soff):
        rt = P.lab("RETRY"); bk = P.lab("BACK"); fl = P.lab("RFAIL")
        b = regs4
        chk = [f"v_sad_u32 v{b}, v{b}, {vF}, 0"] + [f"v_sad_u32 v{b}, v{b+i}, {vF}, v{b}" for i in (1, 2, 3)] + \
              [f"v_cmp_lt_u32 vcc, {limit}, v{b}"]
        P.out_of_line(f"{rt}:", f"buffer_load_dwordx4 {vr(b,4)}, {vL}, {WS}, {soff} offen sc1",
                      f"s_sub_u32 {sBUD}, {sBUD}, 1", f"s_cbranch_scc1 {fl}", "s_waitcnt vmcnt(0)", chk,
                      f"s_cbranch_vccnz {rt}", f"s_branch {bk}",
                      f"{fl}:", f"s_mov_b32 {sBUD}, 0", "s_waitcnt vmcnt(0)", f"s_branch {bk}")
        return chk + [f"s_cbranch_vccnz {rt}", f"{bk}:"]
    for j in range(63):
        ch = (j + 1) >> 3; tl = (j + 1) & 7; off = (ch & 1)*SLOT + tl*TS; b = (j + 1) & 1
        pos[(2*j, 0)].append(f"ds_read_b128 {vr(KF[b],4)}, {vK} offset:{off} ;@kf")
        pos[(2*j, 1)].append(f"ds_read_b128 {vr(VL[b],4)}, {vVlo} offset:{off}")
        pos[(2*j, 2)].append(f"ds_read_b128 {vr(VH[b],4)}, {vVhi} offset:{off}")
        pos[(2*j+1, 0)].append("WAIT lg=kf")
        if j % 8 == 6 and j < 62:
            pos[(2*j+1, 2)] += ["WAIT vm=kv lg=0", "s_barrier"]
        else:
            pos[(2*j+1, 2)].append("WAIT lg=0")
    sched = {}
    sl, sc_ = o["s2_load"], o["s2_chk"]
    sched[(sl, 0)] = ([], f"buffer_load_dwordx4 v[120:123], {vL}, {WS}, {sKVF} offen sc1 ;@f2", None)
    pos[(sc_-1, 2)] += ["WAIT vm=f2"] + check(120, 63, sKVF)
    kd = kv_dma(1)
    for k, q in enumerate([(sc_, 0), (sc_, 1), (sc_, 2), (sc_+2, 0)]):
        sched[q] = (kd[k][0], kd[k][1], "kv")
    pos[(sc_+2, 1)] += adv
    sched[(o["pf_load"], 0)] = ([], f"buffer_load_dwordx4 v[120:123], {vL}, {WS}, {T[3]} offen sc1 ;@f3", None)
    pos[(o["pf_chk"]+1, 2)] += ["WAIT vm=f3"] + check(120, 0, T[3])
    for i in range(6):
        kd = kv_dma(i & 1)
        for k, q in enumerate([(16*i+13, 2), (16*i+15, 0), (16*i+15, 1), (16*i+15, 2)]):
            sched[q] = (kd[k][0], kd[k][1], "kv")
        pos[(16*i+16, 0)] += adv
    wi = 0
    for t in range(1, 128, 2):
        for p in range(3):
            if (t, p) in sched:
                pre, ins, k = sched[(t, p)]
                place(t, p, pre, ins)
                if k == "kv":
                    m0state[0] = "kv"
            elif t > o["pf_chk"] + 2 and wi < len(W):
                place(t, p, *W[wi]); wi += 1
    assert wi == len(W), wi
    E(QK(0))
    for t in range(128):
        e = [f"v_exp_f32 v{S[t&1]+i}, v{S[t&1]+i}" for i in range(16)]
        E(e[0:2])
        if t:
            E(PV(t-1, 1))
        E(pos[(t, 0)], e[2:5])
        if t < 127:
            E(QK(t+1))
        E(pos[(t, 1)], e[5:11], PV(t, 0), pos[(t, 2)], e[11:16])
    E(f"s_lshl2_add_u32 {T[1]}, {sCQ}, {sW}", f"s_lshl_b32 {T[0]}, {sRB}, 4", PV(127, 1))
    LO = f2u(2.0**-60); HI = f2u(2.0**60)
    E(f"s_add_u32 {T[1]}, {T[1]}, {T[0]}",
      f"s_lshl_b32 {T[0]}, {T[1]}, 11", f"s_add_u32 {T[0]}, {T[0]}, {sGR}",
      f"s_lshl_b32 {T[6]}, {T[1]}, 8", f"s_add_u32 {T[6]}, {T[6]}, {sGR}", f"s_add_u32 {T[6]}, {T[6]}, {G_ST}",
      f"s_lshl2_add_u32 {T[1]}, {T[1]}, {sFL}",
      f"v_subrev_u32 v120, {LO}, v{O[0]+8}", f"s_mov_b32 {T[4]}, {HI-LO}",
      f"v_subrev_u32 v121, {LO}, v{O[1]+8}", "v_max_u32 v120, v120, v121", f"v_cmp_lt_u32 vcc, {T[4]}, v120")
    if o["force_slow"]:
        E("s_branch SLOW")
    E("s_cbranch_vccnz SLOW", "SLOWD:")
    stamp()
    for h in range(2):
        E(f"v_rcp_f32 v{O[h]+8}, v{O[h]+8}")
    for h in range(2):
        E([f"v_pk_mul_f32 {vr(O[h]+2*i,2)}, {vr(O[h]+2*i,2)}, {vr(O[h]+8,2)} op_sel_hi:[1,0]" for i in range(4)])
        E([f"v_cvt_pk_bf16_f32 v{O[h]+i}, v{O[h]+2*i}, v{O[h]+2*i+1}" for i in range(4)])
        E(f"buffer_store_dwordx4 {vr(O[h],4)}, {vL}, {WS}, {T[0]} offen offset:{h*1024} ;@ost")
    sl_ = ["SLOW:", "v_mov_b32 v121, 0xff800000", "v_mov_b32 v122, 0xff800000", f"s_mov_b32 {T[4]}, {sKV}", f"s_mov_b32 {T[5]}, 64",
           "SLOW1:", f"buffer_load_dwordx4 {vr(KF[0],4)}, {vL}, {WS}, {T[4]} offen sc1", "s_waitcnt vmcnt(0)", QK(0), QK(1)]
    for h in range(2):
        sl_ += [f"v_max3_f32 v{121+h}, v{S[h]+2*i}, v{S[h]+2*i+1}, v{121+h}" for i in range(8)]
    sl_ += [f"s_add_u32 {T[4]}, {T[4]}, 2048", f"s_sub_u32 {T[5]}, {T[5]}, 1", f"s_cmp_lg_u32 {T[5]}, 0", "s_cbranch_scc1 SLOW1"]
    for h in range(2):
        sl_ += [f"v_mov_b32 v123, v{121+h}", f"v_permlane32_swap_b32 v{121+h}, v123", f"v_max_f32 v{121+h}, v{121+h}, v123"]
    sl_ += [f"v_mov_b32 v{64+i}, 0" for i in range(32)]
    sl_ += ["v_lshrrev_b32 v120, 9, v1", "v_and_b32 v123, 0xf0, v1", "v_lshl_add_u32 v123, v120, 8, v123",
            "v_and_b32 v120, 0x100, v1", "v_cmp_ne_u32 vcc, 0, v120", f"v_mov_b32 v120, {sONE}",
            f"s_mov_b32 {T[4]}, {sKV}", f"s_mov_b32 {T[5]}, 64",
            "SLOW2:", f"buffer_load_dwordx4 {vr(KF[0],4)}, {vL}, {WS}, {T[4]} offen sc1",
            f"buffer_load_dwordx4 {vr(VL[0],4)}, v123, {WS}, {T[4]} offen offset:1024 sc1",
            f"buffer_load_dwordx4 {vr(VH[0],4)}, v123, {WS}, {T[4]} offen offset:1536 sc1", "s_waitcnt vmcnt(0)", QK(0), QK(1)]
    sl_ += [f"v_cndmask_b32 v{b+i}, v{b+i}, v120, vcc" for b in (VL[0], VH[0]) for i in range(4)]
    for h in range(2):
        sl_ += [f"v_sub_f32 v{S[h]+i}, v{S[h]+i}, v{121+h}" for i in range(16)]
        sl_ += [f"v_exp_f32 v{S[h]+i}, v{S[h]+i}" for i in range(16)]
    sl_ += [PV(0, 0), PV(0, 1), PV(1, 0), PV(1, 1), "s_nop 7", "s_nop 7",
            f"s_add_u32 {T[4]}, {T[4]}, 2048", f"s_sub_u32 {T[5]}, {T[5]}, 1", f"s_cmp_lg_u32 {T[5]}, 0", "s_cbranch_scc1 SLOW2",
            "s_branch SLOWD"]
    P.out_of_line(sl_)

    for i in range(8):
        E(f"v_lshlrev_b32 v{32+2*i}, 16, v{RES+i}", f"v_and_b32 v{33+2*i}, {sHI}, v{RES+i}")
    E("WAIT vm=2", "v_add_f32 v28, v28, v29", "v_add_f32 v30, v30, v31", "v_lshlrev_b32 v127, 16, v127", "v_add_f32 v28, v28, v30",
      f"s_lshl_b32 {T[4]}, {sW}, 8", f"s_add_u32 {T[4]}, {T[4]}, {L_TB}",
      "v_bfe_u32 v29, v1, 6, 3", f"v_lshl_add_u32 v29, v29, 5, {T[4]}", "v_bfe_u32 v30, v1, 4, 2", "v_lshl_add_u32 v29, v30, 2, v29",
      "ds_write2_b32 v29, v28, v127 offset1:4")
    E(f"s_lshl_b32 {T[2]}, {sRB}, 6", f"s_add_u32 {T[2]}, {T[2]}, {sFL}", "v_bfe_u32 v121, v1, 2, 6",
      f"s_lshl_b32 {T[3]}, {sRB}, 4", f"s_add_u32 {T[3]}, {T[3]}, {sW}", f"s_lshl_b32 {T[3]}, {T[3]}, 11", f"s_add_u32 {T[3]}, {T[3]}, {sGR}",
      f"s_lshl_b32 {T[4]}, {sW}, 11", f"s_add_u32 {T[4]}, {T[4]}, {RING}",
      "v_and_b32 v122, 0xf0, v1", "v_bfe_u32 v123, v1, 8, 1", "v_lshl_add_u32 v122, v123, 3, v122",
      "v_lshrrev_b32 v123, 9, v1", "v_lshl_add_u32 v122, v123, 2, v122",
      "v_mov_b32 v88, 0", "v_mov_b32 v89, 0")
    publish(T[1], F_O)
    stamp()
    E(f"s_mov_b32 m0, {T[4]}")
    poll("v121", T[2], F_O)
    for s in range(4):
        if s:
            E(f"s_add_u32 m0, {T[4]}, {s*8192}", f"s_add_u32 {T[3]}, {T[3]}, 8192")
        E([f"buffer_load_dwordx4 {vL}, {WS}, {T[3]} offen offset:{k*1024} sc1 lds ;@o{s}" for k in range(2)])
    stamp()
    D = 4
    def rdo(ks):
        L = []
        if ks % 8 == 0:
            L += [f"WAIT vm=o{ks//8}" + (" lg=0" if ks == 0 else ""), "s_barrier"]
        L.append(f"ds_read_b128 {vr(48+4*(ks%8),4)}, {vK} offset:{ks*1024} ;@ob{ks}")
        return L
    for ks in range(D):
        E(rdo(ks))
    for ks in range(32):
        E(f"WAIT lg=ob{ks}", f"v_mfma_f32_32x32x16_bf16 v[32:47], {vr(R+4*ks,4)}, {vr(48+4*(ks%8),4)}, v[32:47]")
        if ks + D < 32:
            E(rdo(ks + D))
    E(f"s_add_u32 {T[0]}, {T[0]}, {G_X1}")
    E(f"s_lshr_b32 {T[5]}, {sC}, 4", f"s_lshl2_add_u32 {T[5]}, {T[5]}, {sW}",
      f"s_lshl_b32 {T[2]}, {T[5]}, 6", f"s_add_u32 {T[2]}, {T[2]}, {sFL}",
      f"s_lshl_b32 {T[3]}, {T[5]}, 15", f"s_add_u32 {T[3]}, {T[3]}, {sGR}", f"s_add_u32 {T[3]}, {T[3]}, {G_X1}",
      f"s_lshl_b32 {T[4]}, {T[5]}, 12", f"s_add_u32 {T[4]}, {T[4]}, {sGR}", f"s_add_u32 {T[4]}, {T[4]}, {G_ST}")
    for h in range(2):
        E([f"v_cvt_pk_bf16_f32 v{80+4*h+i}, v{32+8*h+2*i}, v{33+8*h+2*i}" for i in range(4)])
        E(f"buffer_store_dwordx4 {vr(80+4*h,4)}, {vL}, {WS}, {T[0]} offen offset:{h*1024}")
    for i in range(8):
        E(f"v_dot2c_f32_bf16 v88, {sONE}, v{80+i}", f"v_dot2c_f32_bf16 v89, v{80+i}, v{80+i}")
    E("v_permlane32_swap_b32 v88, v89", "v_add_f32 v88, v88, v89", f"buffer_store_dword v88, v122, {WS}, {T[6]} offen")

    AR = 88
    def a1(t, ks, slot):
        off = (t*16 + ks)*1024
        if off < 65536:
            return f"ds_read_b128 {vr(AR+4*slot,4)}, {vL} offset:{off} ;@a{t}_{ks}"
        return f"ds_read_b128 {vr(AR+4*slot,4)}, v124 offset:{off-65536} ;@a{t}_{ks}"
    E("v_add_u32 v124, 0x10000, v1",
      "v_lshrrev_b32 v123, 8, v1", "v_and_b32 v125, 0xf0, v1", "v_lshl_add_u32 v126, v123, 10, v125", "v_lshl_add_u32 v125, v123, 9, v125",
      f"v_lshlrev_b32 v123, 5, v123", f"v_add_u32 v123, {L_TB}, v123",
      f"s_and_b32 {T[7]}, {sC}, 15", f"s_lshl2_add_u32 {T[8]}, {T[7]}, {T[2]}",
      f"s_mul_i32 {T[7]}, {T[7]}, 7168", f"s_mul_i32 {T[5]}, {T[5]}, 114688", f"s_add_u32 {T[7]}, {T[7]}, {T[5]}",
      f"s_add_u32 {T[7]}, {T[7]}, {sGR}", f"s_add_u32 {T[7]}, {T[7]}, {G_H}",
      f"s_lshl2_add_u32 {T[9]}, {sCQ}, {sW}", f"s_lshl_b32 {T[9]}, {T[9]}, 15", f"s_add_u32 {T[9]}, {T[9]}, {WQF}",
      f"s_cmp_eq_u32 {sLAY}, 0", f"s_cselect_b32 {T[9]}, {T[9]}, 0x20000000")
    publish(T[1], F_X1)
    stamp()
    E([a1(t, 0, t) for t in range(4)])
    poll("v121", T[2], F_X1)
    E([f"buffer_load_dwordx4 {vr(12+4*i,4)}, v126, {WS}, {T[4]} offen offset:{i*256} sc1 ;@sts" for i in range(4)])
    for ks in range(16):
        if ks and ks % 2 == 0:
            E(f"s_add_u32 {T[3]}, {T[3]}, 4096")
        E([f"buffer_load_dwordx4 {vr(R+8*ks+4*u,4)}, v125, {WS}, {T[3]} offen offset:{(ks&1)*2048+u*256} sc1 ;@x{ks}" for u in range(2)])
    stamp()
    def acc(t, u):
        return 32 + 8*t + 4*u
    def m1(t, ks, u, slot):
        d = vr(acc(t, u), 4)
        return f"v_mfma_f32_16x16x32_bf16 {d}, {vr(AR+4*slot,4)}, {vr(R+8*ks+4*u,4)}, {'0' if ks == 0 else d}"
    st = []
    st += ["v_pk_add_f32 v[12:13], v[12:13], v[16:17]", "v_pk_add_f32 v[14:15], v[14:15], v[18:19]",
           "v_pk_add_f32 v[20:21], v[20:21], v[24:25]", "v_pk_add_f32 v[22:23], v[22:23], v[26:27]",
           "v_pk_add_f32 v[12:13], v[12:13], v[20:21]", "v_pk_add_f32 v[14:15], v[14:15], v[22:23]"]
    for sw in ("v_permlane32_swap_b32", "v_permlane16_swap_b32"):
        st += [f"v_mov_b32 v{16+i}, v{12+i}" for i in range(4)]
        st += [f"{sw} v{12+i}, v{16+i}" for i in range(4)]
        st += ["v_pk_add_f32 v[12:13], v[12:13], v[16:17]", "v_pk_add_f32 v[14:15], v[14:15], v[18:19]"]
    st += [f"v_mul_f32 v{12+i}, {f2u(1/512)}, v{12+i}" for i in range(4)]
    st += ["v_fma_f32 v13, -v12, v12, v13", "v_fma_f32 v15, -v14, v14, v15", "v_max_f32 v13, 0, v13", "v_max_f32 v15, 0, v15",
           f"v_add_f32 v13, {f2u(1e-5)}, v13", f"v_add_f32 v15, {f2u(1e-5)}, v15", "v_rsq_f32 v28, v13", "v_rsq_f32 v30, v15",
           "v_mul_f32 v29, -v12, v28", "v_mul_f32 v31, -v14, v30"]
    def gelu(t):
        L = [f"ds_read_b128 v[112:115], v123 offset:{t*128}", f"ds_read_b128 v[116:119], v123 offset:{t*128+16} ;@tb", "WAIT lg=tb"]
        pr = [(acc(t, u) + 2*k, 28 + 2*u, k, 12 + 4*u + 2*k) for u in range(2) for k in range(2)]
        L += [f"v_pk_fma_f32 {vr(a,2)}, {vr(a,2)}, {vr(s,2)}, {vr(116+2*k,2)} op_sel_hi:[1,0,1]" for a, s, k, x in pr]
        L += [f"v_pk_fma_f32 {vr(a,2)}, {vr(112+2*k,2)}, {vr(s,2)}, {vr(a,2)} op_sel:[0,1,0]" for a, s, k, x in pr]
        L += [f"v_pk_mul_f32 {vr(x,2)}, {vr(a,2)}, {vr(a,2)}" for a, s, k, x in pr]
        L += [f"v_pk_fma_f32 {vr(x,2)}, {vr(x,2)}, {sGC}, {sGC} op_sel:[0,0,1] op_sel_hi:[1,0,1]" for a, s, k, x in pr]
        L += [f"v_pk_mul_f32 {vr(x,2)}, {vr(x,2)}, {vr(a,2)}" for a, s, k, x in pr]
        L += [f"v_exp_f32 v{12+i}, v{12+i}" for i in range(8)]
        L += [f"v_pk_add_f32 {vr(x,2)}, {vr(x,2)}, 1.0 op_sel_hi:[1,0]" for a, s, k, x in pr]
        L += [f"v_rcp_f32 v{12+i}, v{12+i}" for i in range(8)]
        L += [f"v_pk_mul_f32 {vr(a,2)}, {vr(a,2)}, {vr(x,2)}" for a, s, k, x in pr]
        ob = 20 + 4*(t & 1)
        L += [f"v_cvt_pk_bf16_f32 v{ob+i}, v{acc(t,0)+2*i}, v{acc(t,0)+2*i+1}" for i in (0, 2, 1, 3)]
        L += ["s_nop 0", f"v_permlane16_swap_b32 v{ob}, v{ob+2}", f"v_permlane16_swap_b32 v{ob+1}, v{ob+3}"]
        if t == 4:
            L.append(f"s_add_u32 {T[7]}, {T[7]}, 4096")
        L.append(f"buffer_store_dwordx4 {vr(ob,4)}, {vL}, {WS}, {T[7]} offen offset:{(t&3)*1024}")
        return L
    fill = list(st)
    E("WAIT vm=sts")
    for ks in range(16):
        b = (ks & 1)*4
        nxt = [a1(t, ks+1, 4-b+t) for t in range(4)] if ks < 15 else [a1(4+t, 0, t) for t in range(3)]
        E(f"WAIT vm=x{ks} lg=0")
        for t in range(4):
            for u in range(2):
                E(m1(t, ks, u, b+t))
                if u == 0 and nxt:
                    E(nxt.pop(0))
                elif fill:
                    E(fill.pop(0))
                    if fill:
                        E(fill.pop(0))
    assert not fill
    fill = []
    for t in range(4):
        fill += gelu(t)
    per = -(-len(fill) // 90)
    for ks in range(16):
        b = (ks & 1)*3
        nxt = [a1(4+t, ks+1, 3-b+t) for t in range(3)] if ks < 15 else []
        wq = []
        if ks:
            k = 2*(ks-1)
            wq = [f"buffer_load_dwordx4 {vr(R+4*(k+i),4)}, {vL}, {WS}, {T[9]} offen offset:{((k+i)&3)*1024} sc1" for i in range(2)]
            if k % 4 == 2:
                wq[1] = [wq[1], f"s_add_u32 {T[9]}, {T[9]}, 4096"]
        E(f"WAIT lg=a6_{ks}")
        for t in range(3):
            for u in range(2):
                E(m1(4+t, ks, u, b+t))
                if u == 0 and nxt:
                    E(nxt.pop(0))
                if u == 1 and wq:
                    E(wq.pop(0))
                if ks or t:
                    for _ in range(per):
                        if fill:
                            E(fill.pop(0))
    E(fill)
    E([f"buffer_load_dwordx4 {vr(R+4*(30+i),4)}, {vL}, {WS}, {T[9]} offen offset:{(2+i)*1024} sc1" for i in range(2)])
    for t in range(4, 7):
        E(gelu(t))

    E(f"s_lshr_b32 {T[0]}, {sC}, 3", f"s_and_b32 {T[1]}, {sC}, 7", f"s_lshl2_add_u32 {T[1]}, {T[1]}, {sW}",
      f"s_lshl_b32 {T[2]}, {T[0]}, 7", f"s_add_u32 {T[2]}, {T[2]}, {sFL}",
      f"s_lshl_b32 {T[3]}, {sW}, 4", f"s_add_u32 {T[3]}, {T[3]}, {T[2]}",
      "v_bfe_u32 v121, v1, 6, 1", "v_bfe_u32 v122, v1, 2, 4", "v_lshl_add_u32 v121, v121, 6, v122",
      f"s_mul_i32 {T[4]}, {T[0]}, {2*114688}", f"s_mul_i32 {T[5]}, {sW}, 28672", f"s_add_u32 {T[4]}, {T[4]}, {T[5]}",
      f"s_add_u32 {T[4]}, {T[4]}, {sGR}", f"s_add_u32 {T[4]}, {T[4]}, {G_H}",
      f"s_lshl_b32 {T[5]}, {T[0]}, 16", f"s_lshl_b32 {T[6]}, {T[1]}, 10", f"s_add_u32 {T[5]}, {T[5]}, {T[6]}",
      f"s_add_u32 {T[5]}, {T[5]}, {sGR}", f"s_add_u32 {T[5]}, {T[5]}, {G_X1}", f"s_add_u32 {T[6]}, {T[5]}, 0x8000",
      f"s_lshl2_add_u32 {T[7]}, {sG}, {T[0]}", f"s_lshl_b32 {T[7]}, {T[7]}, 16", f"s_lshl_b32 {T[9]}, {T[1]}, 5",
      f"s_add_u32 {T[7]}, {T[7]}, {T[9]}",
      f"s_lshl2_add_u32 {T[1]}, {T[1]}, {T[2]}",
      f"v_bfe_u32 {vXB}, v1, 4, 5", "v_lshrrev_b32 v122, 9, v1", "v_lshlrev_b32 v122, 4, v122", f"v_lshl_add_u32 {vXB}, {vXB}, 10, v122",
      f"s_lshl_b32 {T[9]}, {sW}, 11", f"v_add_u32 v31, {T[9]}, v1")
    E([f"v_xor_b32 v{27+p}, {p*2048}, v31" for p in (1, 2, 3)])
    E([f"v_add_u32 v{28+p}, {RING}, v{28+p}" for p in range(4)])
    publish(T[8], F_H)
    stamp()
    E([f"v_accvgpr_read_b32 v{88+i}, a{AB2+i}" for i in range(4)])
    for i in range(4):
        E(f"v_lshlrev_b32 v{80+2*i}, 16, v{88+i}", f"v_and_b32 v{81+2*i}, {sHI}, v{88+i}")
    E([f"v_mov_b32 v{40+i}, 0" for i in range(8)], [f"v_mov_b32 v{72+i}, 0" for i in range(8)])
    poll("v121", T[3], F_H)
    E(f"buffer_load_dwordx4 v[88:91], {vL}, {WS}, {T[5]} offen sc1 ;@r0", f"buffer_load_dwordx4 v[92:95], {vL}, {WS}, {T[6]} offen sc1 ;@r1")
    LR = [96+4*i for i in range(8)] + [12+4*i for i in range(4)]
    NL = len(LR)
    def hl(n):
        u, ks = divmod(n, 28)
        L = []
        if n and ks % 4 == 0:
            L.append(f"s_add_u32 {T[4]}, {T[4]}, {4096 if ks else 114688-6*4096}")
        L.append(f"buffer_load_dwordx4 {vr(LR[n%NL],4)}, {vL}, {WS}, {T[4]} offen offset:{(ks&3)*1024} sc1 ;@h{n}")
        return L
    for n in range(NL):
        E(hl(n))
    stamp()
    def resid(u):
        L = []
        for i in range(4):
            L += [f"v_lshlrev_b32 v{32+32*u+2*i}, 16, v{88+4*u+i}", f"v_and_b32 v{33+32*u+2*i}, {sHI}, v{88+4*u+i}"]
        L += [f"v_pk_add_f32 {vr(32+32*u+2*i,2)}, {vr(32+32*u+2*i,2)}, {vr(80+2*i,2)}" for i in range(4)]
        return L
    def red_w(u):
        return [f"ds_write_b128 v{27+p}, {vr(32+32*u+8*p+4*k,4)} offset:{(p-1)*8192+k*1024}" for p in (1, 2, 3) for k in range(2)]
    def red_r(u):
        return [f"ds_read_b128 {vr(32+32*u+8*p+4*k,4)}, v31 offset:{(p-1)*8192+k*1024} ;@rr{p}" for p in (1, 2, 3) for k in range(2)]
    def red_f(u):
        b = 32 + 32*u; L = []
        for p in (1, 2, 3):
            L += [f"WAIT lg=rr{p}"] + [f"v_pk_add_f32 {vr(b+2*i,2)}, {vr(b+2*i,2)}, {vr(b+8*p+2*i,2)}" for i in range(4)]
        L += [f"v_cvt_pk_bf16_f32 v{b+i}, v{b+2*i}, v{b+2*i+1}" for i in range(4)]
        L.append(f"buffer_store_dwordx4 {vr(b,4)}, {vXB}, {OUT}, {T[7]} offen")
        if u == 0:
            L.append(f"s_add_u32 {T[7]}, {T[7]}, 0x8000")
        return L
    E("WAIT vm=r0", resid(0))
    ex = {n: [] for n in range(56)}
    r1 = resid(1)
    for i in range(3):
        ex[1+i] = r1[4*i:4*i+4]
    w = red_w(0)
    for i in range(6):
        ex[30+i] = [w[i]]
    ex[37] = ["WAIT lg=0", "s_barrier"]
    w = red_r(0)
    for i in range(3):
        ex[38+i] = w[2*i:2*i+2]
    w = red_f(0)
    for i in range(5):
        ex[42+i] = w[5*i:5*i+5]
    ex[50] = ["s_barrier"]
    for n in range(56):
        u, ks = divmod(n, 28)
        E(f"WAIT vm=h{n}")
        for ct in range(2):
            d = vr(32+32*u+16*ct, 16)
            E(f"v_mfma_f32_32x32x16_bf16 {d}, {ar((ks*2+ct)*4,4)}, {vr(LR[n%NL],4)}, {'0' if (ks == 0 and ct) else d}")
            if ct == 0:
                E(ex[n])
        if n + NL < 56:
            E(hl(n + NL))
    E(red_w(1), "WAIT lg=0", "s_barrier", red_r(1), red_f(1))
    E(f"s_cmp_lg_u32 {sLAY}, 0", "s_cbranch_scc1 FINAL")
    E("v_bfe_u32 v126, v1, 2, 7", f"s_mov_b32 {T[5]}, {T[1]}", f"s_mov_b32 {T[6]}, {T[2]}",
      f"s_add_u32 {sKV}, {sKV}, 0x20000", f"s_add_u32 {sKVF}, {sKVF}, 1024")
    x_dma_setup()
    publish(T[5], F_X2)
    stamp()
    p1_addr()
    poll("v126", T[6], F_X2)
    x_dma(OUT, " sc1")
    E(f"s_mov_b32 {sLAY}, 1", f"s_add_u32 {sGR}, {sGR}, {8<<21}", f"s_add_u32 {sFL}, {sFL}, {8*2048}",
      "s_mov_b32 s12, s52", "s_mov_b32 s13, s53")
    p1(False)
    E("s_branch LAYER")
    E("FINAL:")
    if o.get("diag_delay"):
        if o.get("diag_safe"):
            E(f"s_cmp_eq_u32 {sSAFE}, 0", "s_cbranch_scc1 DLYD")
        E("s_memtime s[92:93]", "s_waitcnt lgkmcnt(0)", "s_mov_b32 s70, s92", "DLY:", "s_memtime s[92:93]", "s_waitcnt lgkmcnt(0)",
          "s_sub_u32 s71, s92, s70", f"s_cmp_lt_u32 s71, {o['diag_delay']}", "s_cbranch_scc1 DLY", "DLYD:")
    if o["debug"]:
        E("s_waitcnt vmcnt(0)")
        stamp()
        E("s_memrealtime s[92:93]", "s_waitcnt lgkmcnt(0)", "v_writelane_b32 v0, s92, 1",
          f"s_lshl2_add_u32 {T[0]}, s2, {sW}", f"s_lshl_b32 {T[0]}, {T[0]}, 8", f"s_add_u32 {T[0]}, {T[0]}, {DBG}",
          f"v_writelane_b32 v0, {sBUD}, 62", f"v_writelane_b32 v0, {sSAFE}, 63",
          "v_lshrrev_b32 v2, 2, v1", f"buffer_store_dword v0, v2, {WS}, {T[0]} offen")
    E(f"s_or_b32 {T[0]}, s2, {sW}", f"s_cmp_lg_u32 {T[0]}, 0", "s_cbranch_scc1 KEXIT",
      "s_mov_b64 exec, 1", f"buffer_store_dword {vF}, off, {WS}, 0 sc1")
    E("KEXIT:", "s_endpgm")
    P.flush_ool()
    E("KEND:")
    body = P.finish()
    ref = open(f"cdna_kernels/{NAME}.s.ref").read().split("\n")
    head = []
    for l in ref:
        if l.startswith("; @launch"):
            l = f"; @launch grid=(256,1,1) block=(256,1,1) lds={LDS_BYTES}"
        head.append(l)
        if l.startswith(NAME + "_kernel:"):
            break
    tail = f""".section .rodata,"a"
.p2align 6
.amdhsa_kernel {NAME}_kernel
  .amdhsa_next_free_vgpr 512
  .amdhsa_next_free_sgpr 102
  .amdhsa_accum_offset 256
  .amdhsa_group_segment_fixed_size 0
  .amdhsa_kernarg_size 104
  .amdhsa_user_sgpr_count 2
  .amdhsa_user_sgpr_kernarg_segment_ptr 1
  .amdhsa_system_sgpr_workgroup_id_x 1
.end_amdhsa_kernel
"""
    return "\n".join(head) + "\n" + body + tail, P


if __name__ == "__main__":
    kw = {}
    out = f"cdna_kernels/{NAME}.s"
    for a in sys.argv[1:]:
        k, v = a.split("=")
        if k == "out":
            out = v
        else:
            kw[k] = int(v)
    s, P = gen(**kw)
    open(out, "w").write(s)
    print("lines", len(P.I), "auto-pad states", P.padded)
```

```python
import sys, struct, os
sys.path.insert(0, os.path.dirname(os.path.abspath(__file__)))
from asmlib import *

NAME = "interleave_layers__grouped_kv_mqa__dense_activation_gelu__prompt"
OPT = dict(debug=0, force_safe=0, force_slow=0, s2_load=1, s2_chk=5, pf_load=9, pf_chk=13)

def f2u(x):
    return struct.unpack("<I", struct.pack("<f", x))[0]

KVF0 = 0x1000; PREPF = 0x2000; GFL0 = 0x4000
CS1 = 0x10000; KV0 = 0x40000; WOF = 0x80000; WQF = 0x100000; W1F = 0x200000; W2F = 0x400000
X2 = 0x600000; GRP0 = 0x800000; DBG = 0x3000000
G_O = 0; G_X1 = 0x40000; G_ST = 0x80000; G_H = 0x100000
LSTEP = 8
F_O = 0; F_X1 = 512; F_H = 1024; F_X2 = 1536
RING = 114688; XT = RING; SLOT = 16512; TS = 2064
MISC = 147968
L_MU = MISC; L_CSQ = MISC + 256; L_TB = MISC + 1024; L_KVP = MISC + 2048; L_CKP = MISC + 6144
LDS_BYTES = 163840
WS = "s[4:7]"; XIN = "s[8:11]"; OUT = "s[12:15]"; SA = "s[16:19]"; SB = "s[20:23]"; SC = "s[24:27]"
sF, sBUD, sLAY, sSAFE = "s28", "s29", "s30", "s31"
sG, sC, sW, sRB, sCQ, sGR, sFL, sKV, sKVF, sXCC, sONE = [f"s{i}" for i in range(58, 69)]
T = [f"s{i}" for i in range(70, 80)]
sA1, sA2a, sA2b, sAO, sCH, sM0K, sM0W = [f"s{i}" for i in range(80, 87)]
sPD = "s87"
sGC = "s[88:89]"
sST = "s90"; sHI = "s91"
sW0 = "s[94:95]"
vL, vIDX, vK, vVlo, vVhi, vF, vXB = "v1", "v2", "v3", "v4", "v5", "v6", "v7"
CK = 8; RES = 12; Q = 20; R = 128
AKV = 224; AB2 = 240


def gen(**kw):
    o = dict(OPT); o.update(kw)
    P = Prog(); E = P

    def stamp():
        if o.get("diag_rt"):
            a = P.lab("DG"); b = P.lab("DGD")
            E(f"s_cmp_eq_u32 {sST}, {o['diag_at']}", f"s_cbranch_scc1 {a}", f"{b}:", f"s_add_u32 {sST}, {sST}, 1")
            P.out_of_line(f"{a}:", "s_memrealtime s[92:93]", "s_waitcnt lgkmcnt(0)", "s_sub_u32 s92, s92, s96",
                          f"s_cmp_lt_u32 s92, {o['diag_rt']}", f"s_cbranch_scc1 {a}", f"s_branch {b}")
        if not o["debug"]:
            return
        E("s_memtime s[92:93]", "s_waitcnt lgkmcnt(0)", f"s_mov_b32 m0, {sST}", "v_writelane_b32 v0, s92, m0",
          f"s_add_u32 {sST}, {sST}, 1")

    def poll(vaddr, soff, imm=0, vt="v120", rng=False, inv=True):
        lp = P.lab("POLL"); dn = P.lab("PDONE"); fl = P.lab("PFAIL")
        E(f"{lp}:", f"buffer_load_dword {vt}, {vaddr}, {WS}, {soff} offen offset:{imm} sc1",
          f"s_sub_u32 {sBUD}, {sBUD}, 1", f"s_cbranch_scc1 {fl}", "s_waitcnt vmcnt(0)")
        if rng:
            E(f"v_sub_u32 {vt}, {vt}, {vF}", f"v_cmp_lt_u32 vcc, 15, {vt}")
        else:
            E(f"v_cmp_ne_u32 vcc, {vt}, {vF}")
        E(f"s_cbranch_vccnz {lp}", f"{dn}:")
        P.out_of_line(f"{fl}:", f"s_mov_b32 {sBUD}, 0", "s_waitcnt vmcnt(0)", f"s_branch {dn}")
        if inv:
            a = P.lab("INV"); b = P.lab("INVD")
            E(f"s_cmp_lg_u32 {sSAFE}, 0", f"s_cbranch_scc1 {a}", f"{b}:")
            P.out_of_line(f"{a}:", "buffer_inv sc1", "s_waitcnt vmcnt(0)", f"s_branch {b}")

    def publish(soff, imm):
        a = P.lab("PUBS"); b = P.lab("PUBD")
        E(f"s_cmp_lg_u32 {sSAFE}, 0", "s_mov_b64 exec, 1", "s_waitcnt vmcnt(0)", f"s_cbranch_scc1 {a}",
          f"buffer_store_dword {vF}, off, {WS}, {soff} offset:{imm}", f"{b}:", "s_mov_b64 exec, -1")
        P.out_of_line(f"{a}:", "buffer_wbl2 sc1", "s_waitcnt vmcnt(0)",
                      f"buffer_store_dword {vF}, off, {WS}, {soff} offset:{imm} sc1", f"s_branch {b}")

    def srd(base, lo, size):
        E(f"s_mov_b32 s{base}, s{lo}", f"s_mov_b32 s{base+1}, s{lo+1}", f"s_mov_b32 s{base+2}, {size}",
          f"s_mov_b32 s{base+3}, 0x20000")

    def x_dma(SRD, sc):
        for i in range(8):
            if i == 4:
                E(f"s_add_u32 {T[0]}, {T[0]}, 4096")
            E(f"s_add_u32 m0, {T[1]}, {(i>>2)*4160 + (i&3)*16}", "s_nop 0",
              f"buffer_load_dwordx4 {vL}, {SRD}, {T[0]} offen offset:{(i&3)*1024}{sc} lds ;@x")

    def x_dma_setup():
        E(f"s_lshl_b32 {T[0]}, {sG}, 3", f"s_add_u32 {T[0]}, {T[0]}, {sRB}", f"s_lshl2_add_u32 {T[0]}, {T[0]}, {sW}",
          f"s_lshl_b32 {T[0]}, {T[0]}, 13",
          f"s_mul_i32 {T[1]}, {sW}, 8320", f"s_add_u32 {T[1]}, {T[1]}, {XT}")

    E("s_cmp_ge_u32 s2, 256", "s_cbranch_scc1 KEXIT")
    E("s_load_dwordx16 s[32:47], s[0:1], 0", "s_load_dwordx8 s[48:55], s[0:1], 64", "s_load_dwordx2 s[56:57], s[0:1], 96")
    if o.get("diag_rt"):
        E("s_memrealtime s[96:97]", f"s_mov_b32 {sST}, 1")
    E("s_getpc_b64 s[70:71]", "PCREF:")
    E("v_lshrrev_b32 v2, 6, v0", "v_lshlrev_b32 v3, 7, v0", f"v_readfirstlane_b32 {sW}, v2",
      "s_mov_b32 s72, KEND-PCREF-4")
    for i in range(2):
        E(f"v_add_u32 v4, {i*32768}, v3", "v_min_u32 v4, s72, v4", "v_mov_b32 v5, s71",
          "v_add_co_u32 v4, vcc, s70, v4", "v_addc_co_u32 v5, vcc, 0, v5, vcc",
          f"global_load_dword v{254+i}, v[4:5], off")
    E("v_and_b32 v1, 63, v0", "v_lshlrev_b32 v1, 4, v1")
    if o["debug"]:
        E("v_mov_b32 v0, 0", f"s_mov_b32 {sST}, 2", "s_memrealtime s[92:93]", "s_waitcnt lgkmcnt(0)", "v_writelane_b32 v0, s92, 0")
        stamp()
    E(f"s_and_b32 {sG}, s2, 7", f"s_lshr_b32 {sC}, s2, 3", f"s_lshr_b32 {sRB}, s2, 5", f"s_and_b32 {sCQ}, {sC}, 3")
    x_dma_setup()
    E(f"s_mul_i32 {T[2]}, {sW}, 28672")
    E(f"s_lshl_b32 {T[3]}, {sW}, 12")
    E("v_lshrrev_b32 v32, 6, v1", "v_lshlrev_b32 v32, 10, v32", "v_and_or_b32 v32, v1, 48, v32")
    E("s_waitcnt lgkmcnt(0)")
    E(f"s_load_dword {sF}, s[56:57], 0")
    srd(8, 32, 0x200000)
    x_dma(XIN, "")
    E(f"s_bitcmp1_b32 {sCQ}, 0", "s_cselect_b32 s20, s38, s36", "s_cselect_b32 s21, s39, s37",
      "s_mov_b32 s22, 16384", "s_mov_b32 s23, 0x20000", f"s_mov_b32 m0, {T[2]}")
    srd(16, 34, 0x80000)
    for i in range(4):
        E(f"buffer_load_dwordx4 {vL}, {SB}, {T[3]} offen offset:{i*1024} lds ;@wkv")
    E("v_lshrrev_b32 v35, 9, v1", "v_lshlrev_b32 v33, 9, v35",
      "v_bfe_u32 v35, v1, 6, 2", "v_lshl_add_u32 v33, v35, 6, v33",
      "v_bfe_u32 v35, v1, 8, 1", "v_lshl_add_u32 v33, v35, 5, v33",
      "v_bfe_u32 v35, v1, 4, 1", "v_lshl_add_u32 v33, v35, 4, v33",
      "v_bfe_u32 v35, v1, 5, 1", "v_lshl_add_u32 v33, v35, 3, v33",
      f"v_add_u32 v33, {T[2]}, v33",
      "v_and_b32 v34, 0x300, v1", "v_bfe_u32 v35, v1, 4, 4", "v_lshl_add_u32 v34, v35, 3, v34",
      f"v_add_u32 v34, {T[2]}, v34")
    E("s_cmp_lt_u32 s2, 112", "s_cbranch_scc1 PJ1")
    E("s_cmp_lt_u32 s2, 224", "s_cselect_b32 s24, s48, s40", "s_cselect_b32 s25, s49, s41",
      "s_cselect_b32 s26, 0x1c0000, s18", f"s_cselect_b32 {T[7]}, 0x70, 32", f"s_cselect_b32 {T[8]}, 0, 0x70",
      f"s_cselect_b32 {sPD}, {W2F - WOF}, 0", f"s_add_u32 {sPD}, {sPD}, {WOF}",
      f"s_sub_u32 {T[8]}, s2, {T[8]}", f"s_sub_u32 {T[8]}, {T[8]}, 0x70",
      f"s_and_b32 {T[9]}, {T[8]}, 7", f"s_lshl_b32 {T[9]}, {T[9]}, 1", f"s_and_b32 {T[4]}, {sW}, 1",
      f"s_add_u32 {T[9]}, {T[9]}, {T[4]}",
      f"s_lshr_b32 {T[8]}, {T[8]}, 3", f"s_lshl_b32 {T[8]}, {T[8]}, 1", f"s_lshr_b32 {T[4]}, {sW}, 1",
      f"s_add_u32 {T[8]}, {T[8]}, {T[4]}",
      f"s_lshl_b32 {T[4]}, {T[8]}, 16", f"s_lshl_b32 {T[5]}, {T[9]}, 6", f"s_add_u32 {T[4]}, {T[4]}, {T[5]}",
      f"s_mul_i32 {T[9]}, {T[9]}, {T[7]}", f"s_lshl2_add_u32 {T[9]}, {T[8]}, {T[9]}", f"s_lshl_b32 {T[9]}, {T[9]}, 10",
      f"s_add_u32 {sPD}, {sPD}, {T[9]}", f"s_mov_b32 {T[5]}, 16384", f"s_mov_b32 {T[6]}, 0x20000000",
      "v_mov_b32 v36, v32", "v_mov_b32 v28, v33", "v_add_u32 v29, 256, v33", "s_branch PJD")
    E("PJ1:", "s_mov_b32 s24, s44", "s_mov_b32 s25, s45", "s_mov_b32 s26, 0x1c0000",
      f"s_and_b32 {T[8]}, s2, 3", f"s_and_b32 {T[9]}, s2, 0xfc", f"s_add_u32 {T[9]}, {T[9]}, {sW}",
      f"s_mul_i32 {T[4]}, {T[8]}, {128*3584}", f"s_lshl_b32 {T[5]}, {T[9]}, 5", f"s_add_u32 {T[4]}, {T[4]}, {T[5]}",
      f"s_mul_i32 {T[6]}, {T[8]}, 7168", f"s_lshl1_add_u32 {T[6]}, {T[5]}, {T[6]}", f"s_add_u32 {T[6]}, {T[6]}, {CS1}",
      f"s_lshl2_add_u32 {T[9]}, {T[9]}, {T[8]}", f"s_lshl_b32 {T[9]}, {T[9]}, 12", f"s_add_u32 {sPD}, {T[9]}, {W1F}",
      f"s_mov_b32 {T[5]}, {32*3584}",
      "v_lshrrev_b32 v36, 5, v1", "v_mul_u32_u24 v36, 3584, v36", "v_and_or_b32 v36, v1, 16, v36",
      "v_mov_b32 v28, v34", "v_add_u32 v29, 128, v34")
    E("PJD:", "s_mov_b32 s27, 0x20000")
    for i in range(4):
        E(f"s_add_u32 m0, {T[2]}, {(4+i)*1024}", "s_nop 0",
          f"buffer_load_dwordx4 v36, {SC}, {T[4]} offen lds ;@prep", f"s_add_u32 {T[4]}, {T[4]}, {T[5]}")
    E(f"s_lshl2_add_u32 {T[3]}, {sCQ}, {sW}", f"s_lshl_b32 {T[3]}, {T[3]}, 6")
    def wq_slot(ks):
        return 8 + ks if ks < 20 else (ks - 20 if ks < 28 else ks - 20)
    def wq_dma(ks):
        E(f"s_add_u32 m0, {T[2]}, {wq_slot(ks)*1024}", "s_nop 0",
          f"buffer_load_dwordx4 v30, {SA}, {T[3]} offen lds ;@wq{ks}", f"s_add_u32 {T[3]}, {T[3]}, 16384")
    E("v_mov_b32 v30, v32", "v_mov_b32 v31, v33")
    for ks in range(20):
        wq_dma(ks)
    srd(4, 56, 0x10000000)
    E(f"s_add_u32 s12, s56, {X2}", "s_addc_u32 s13, s57, 0", "s_mov_b32 s14, 0x200000", "s_mov_b32 s15, 0x20000")
    srd(20, 50, 1024)
    srd(24, 46, 3584)
    E(f"s_and_b32 {T[4]}, {sC}, 7", f"s_lshl2_add_u32 {T[4]}, {T[4]}, {sW}", f"s_lshl_b32 {T[4]}, {T[4]}, 5",
      "v_lshrrev_b32 v35, 9, v1", "v_lshlrev_b32 v35, 4, v35",
      f"buffer_load_dwordx4 {ar(AB2,4)}, v35, {SB}, {T[4]} offen ;@b2")
    E(f"s_getreg_b32 {sXCC}, hwreg(HW_REG_XCC_ID, 0, 4)", f"s_mov_b32 {sONE}, 0x3f803f80", f"s_mov_b32 {sBUD}, 0x40000",
      f"s_mov_b32 {sLAY}, 0", f"s_mov_b32 {sSAFE}, 0", f"s_mov_b32 {sHI}, 0xffff0000",
      f"s_lshl_b32 {sGR}, {sG}, 21", f"s_add_u32 {sGR}, {sGR}, {GRP0}",
      f"s_lshl_b32 {sFL}, {sG}, 11", f"s_add_u32 {sFL}, {sFL}, {GFL0}",
      f"s_mov_b32 {sKV}, {KV0}", f"s_mov_b32 {sKVF}, {KVF0}",
      f"s_mul_i32 {sM0K}, {sW}, {2*TS}", f"s_add_u32 {sM0K}, {sM0K}, {RING}",
      f"s_mov_b32 s88, {f2u(-0.7978845608028654*2*1.4426950408889634*0.044715)}",
      f"s_mov_b32 s89, {f2u(-0.7978845608028654*2*1.4426950408889634)}",
      f"s_cmp_eq_u32 {sW}, 0", "s_cselect_b32 s94, 1, 0", "s_mov_b32 s95, 0")
    E(f"v_mov_b32 {vIDX}, 0xdddddddd", f"v_add_u32 {vK}, {RING}, v1",
      "v_lshrrev_b32 v35, 9, v1", "v_and_b32 v4, 0xf0, v1", "v_lshl_add_u32 v4, v35, 8, v4",
      f"v_add_u32 v4, {RING+1024}, v4", "v_add_u32 v5, 512, v4", "v_and_b32 v35, 0x100, v1", "v_cmp_ne_u32 vcc, 0, v35",
      f"v_mov_b32 v35, {RING+2048}", "v_cndmask_b32 v4, v4, v35, vcc", "v_cndmask_b32 v5, v5, v35, vcc")
    E("s_waitcnt lgkmcnt(0)", f"s_add_u32 {sF}, {sF}, 0x9e3779b9", f"v_mov_b32 {vF}, {sF}")

    def p1_addr():
        E(f"s_mul_i32 {T[7]}, {sW}, 8320", f"s_add_u32 {T[7]}, {T[7]}, {XT}",
          "v_lshrrev_b32 v96, 7, v1", "v_mul_u32_u24 v112, 1040, v96", "v_and_b32 v97, 0x70, v1",
          f"v_add3_u32 v112, v112, v97, {T[7]}",
          f"s_lshl_b32 {T[7]}, {sW}, 5", f"s_add_u32 {T[7]}, {T[7]}, {L_MU}", f"v_lshl_add_u32 v114, v96, 2, {T[7]}",
          f"s_lshr_b32 {T[8]}, {sCQ}, 1",
          f"s_mul_i32 {T[7]}, {T[8]}, {16*1040}", f"s_lshl_b32 {T[9]}, {sW}, 8", f"s_add_u32 {T[7]}, {T[7]}, {T[9]}",
          f"s_add_u32 {T[7]}, {T[7]}, {XT}",
          "v_bfe_u32 v96, v1, 4, 4", "v_lshrrev_b32 v97, 8, v1",
          "v_mul_u32_u24 v113, 1040, v96", "v_lshl_add_u32 v113, v97, 4, v113", f"v_add_u32 v113, {T[7]}, v113",
          f"s_lshl_b32 {T[7]}, {sW}, 10", f"s_add_u32 {T[7]}, {T[7]}, {L_KVP}", f"v_add_u32 v115, {T[7]}, v1",
          f"s_bitcmp1_b32 {sCQ}, 0", "s_cselect_b64 vcc, -1, 0", f"s_cselect_b32 {T[9]}, 4, 0",
          f"s_lshl_b32 {T[7]}, {T[8]}, 6", f"s_add_u32 {T[7]}, {T[7]}, {L_MU}",
          "v_lshlrev_b32 v98, 2, v97", "v_cndmask_b32 v98, v96, v98, vcc", f"v_lshl_add_u32 v116, v98, 2, {T[7]}",
          f"v_add_u32 v117, {T[9]}, v116", f"v_add_u32 v118, {T[9]}, v117", f"v_add_u32 v119, {T[9]}, v118",
          "v_lshrrev_b32 v100, 1, v97", "v_and_b32 v101, 1, v97", "v_lshlrev_b32 v101, 3, v101",
          "v_lshl_add_u32 v98, v100, 9, v101", "v_lshl_add_u32 v98, v96, 4, v98",
          f"s_lshl_b32 {T[7]}, {T[8]}, 8", f"v_add_u32 v98, {T[7]}, v98",
          "v_lshl_add_u32 v99, v100, 8, v101", "v_and_b32 v100, 0x30, v1", "v_add_u32 v99, v99, v100",
          "v_bfe_u32 v100, v1, 6, 1", "v_lshl_add_u32 v99, v100, 7, v99",
          "v_bfe_u32 v100, v1, 7, 1", "v_lshl_add_u32 v99, v100, 6, v99",
          f"s_lshl_b32 {T[7]}, {T[8]}, 9", f"s_add_u32 {T[7]}, {T[7]}, 1024", f"v_add_u32 v99, {T[7]}, v99",
          "v_cndmask_b32 v121, v98, v99, vcc",
          "v_bfe_u32 v96, v1, 4, 5", "v_lshrrev_b32 v97, 9, v1",
          f"v_mul_u32_u24 {vXB}, 1040, v96", f"v_lshl_add_u32 {vXB}, v97, 4, {vXB}", f"v_add_u32 {vXB}, {XT}, {vXB}",
          f"s_lshl2_add_u32 {T[7]}, {sCQ}, {sW}", f"s_lshl_b32 {T[7]}, {T[7]}, 6", f"v_add_u32 v122, {T[7]}, {vXB}",
          "v_lshlrev_b32 v96, 2, v96", f"v_add_u32 v123, {L_MU}, v96",
          f"s_lshl_b32 {T[7]}, {sW}, 7", f"s_add_u32 {T[7]}, {T[7]}, {L_CSQ}",
          f"v_add_u32 v124, {T[7]}, v96", f"v_lshl_add_u32 v125, v97, 4, {T[7]}",
          f"s_lshl_b32 {T[8]}, {sG}, 3", f"s_add_u32 {T[8]}, {T[8]}, {sRB}", f"s_lshl_b32 {T[8]}, {T[8]}, 11",
          f"s_add_u32 {T[8]}, {T[8]}, {sKV}",
          f"s_lshl_b32 {T[9]}, {sG}, 5", f"s_add_u32 {T[9]}, {T[9]}, {sC}", f"s_lshl2_add_u32 {T[9]}, {T[9]}, {sKVF}")
        E([f"v_mov_b32 v{84+i}, 0" for i in range(4)])

    def p1(first):
        if first:
            E("v_mov_b32 v126, v34")
            E([f"v_mov_b32 v{108+i}, {sONE}" for i in range(4)])
        E("WAIT vm=x")
        stamp()
        E([f"ds_read_b128 {vr(32+4*i,4)}, v112 offset:{i*128} ;@st{i}" for i in range(8)])
        if first:
            E("WAIT vm=wkv")
            for ks in range(4):
                E(f"ds_read_b64_tr_b16 {ar(AKV+4*ks,2)}, v126 offset:{ks*1024}",
                  f"ds_read_b64_tr_b16 {ar(AKV+4*ks+2,2)}, v126 offset:{ks*1024+128}")
        E("s_barrier")
        E([f"ds_read_b128 {vr(64+4*i,4)}, v113 offset:{i*64} ;@kx" for i in range(4)])
        def dots(i):
            L = []
            for r in range(4):
                x = 32 + 4*i + r
                L += [f"v_dot2c_f32_bf16 v{84+(r&1)}, {sONE}, v{x}", f"v_dot2c_f32_bf16 v{86+(r&1)}, v{x}, v{x}"]
            return L
        for i in range(4):
            E(f"WAIT lg=st{i}", dots(i))
        E(f"s_bitcmp1_b32 {sCQ}, 0", "WAIT lg=0")
        lv = P.lab("KVV"); ld = P.lab("KVD")
        E(f"s_cbranch_scc1 {lv}")
        def kvm(isv_):
            L = []
            for ks in range(4):
                w = ar(AKV+4*ks, 4); x = vr(64+4*ks, 4); on = vr(108, 4)
                a, b = (x, w) if isv_ else (w, x)
                L.append(f"v_mfma_f32_16x16x32_bf16 v[80:83], {a}, {b}, {'0' if ks == 0 else 'v[80:83]'}")
                if first:
                    a, b = (on, w) if isv_ else (w, on)
                    L.append(f"v_mfma_f32_16x16x32_bf16 {vr(CK,4)}, {a}, {b}, {'0' if ks == 0 else vr(CK,4)}")
            return L
        E(kvm(False), f"{ld}:")
        P.out_of_line(f"{lv}:", kvm(True), f"s_branch {ld}")
        for i in range(4, 8):
            E(dots(i))
        E("ds_write_b128 v115, v[80:83]")
        if first:
            E(f"ds_write_b128 v115, {vr(CK,4)} offset:{L_CKP-L_KVP}")
        E("v_add_f32 v84, v84, v85", "v_add_f32 v86, v86, v87")
        for d in ("quad_perm:[1,0,3,2]", "quad_perm:[2,3,0,1]", "row_half_mirror"):
            E(f"v_add_f32_dpp v84, v84, v84 {d} row_mask:0xf bank_mask:0xf",
              f"v_add_f32_dpp v86, v86, v86 {d} row_mask:0xf bank_mask:0xf")
        E(f"v_mul_f32 v84, {f2u(1/512)}, v84", f"v_mul_f32 v86, {f2u(1/512)}, v86",
          "v_fma_f32 v86, -v84, v84, v86", "v_max_f32 v86, 0, v86", f"v_add_f32 v86, {f2u(1e-5)}, v86",
          "v_rsq_f32 v86, v86", "s_nop 0", "ds_write2_b32 v114, v84, v86 offset1:32",
          f"s_cmp_lg_u32 {sW}, 0", "WAIT lg=0", "s_barrier")
        lk = P.lab("KVSKIP")
        E(f"s_cbranch_scc1 {lk}")
        E([f"ds_read_b128 {vr(64+4*i,4)}, v115 offset:{1024*(i+1)} ;@opt" for i in range(3)])
        if first:
            E([f"ds_read_b128 {vr(96+4*i,4)}, v115 offset:{L_CKP-L_KVP+1024*(i+1)} ;@opt" for i in range(3)])
        E([f"ds_read2_b32 {vr(88+2*i,2)}, v{116+i} offset1:32 ;@opt" for i in range(4)])
        E("WAIT lg=4")
        for i in range(3):
            E(f"v_pk_add_f32 v[80:81], v[80:81], {vr(64+4*i,2)}", f"v_pk_add_f32 v[82:83], v[82:83], {vr(66+4*i,2)}")
        if first:
            for i in range(3):
                E(f"v_pk_add_f32 {vr(CK,2)}, {vr(CK,2)}, {vr(96+4*i,2)}", f"v_pk_add_f32 {vr(CK+2,2)}, {vr(CK+2,2)}, {vr(98+4*i,2)}")
        E("WAIT lg=0")
        E([f"v_fma_f32 v{80+i}, -v{88+2*i}, v{CK+i}, v{80+i}" for i in range(4)])
        E([f"v_mul_f32 v{80+i}, v{80+i}, v{89+2*i}" for i in range(4)])
        E("v_cvt_pk_bf16_f32 v80, v80, v81", "v_cvt_pk_bf16_f32 v81, v82, v83",
          f"buffer_store_dwordx2 v[80:81], v121, {WS}, {T[8]} offen sc1 ;@opt kvst")
        E(f"{lk}:")
        stamp()
        def trq(ks):
            return [f"ds_read_b64_tr_b16 {vr(R+4*ks,2)}, v31 offset:{wq_slot(ks)*1024}",
                    f"ds_read_b64_tr_b16 {vr(R+4*ks+2,2)}, v31 offset:{wq_slot(ks)*1024+256}"]
        if first:
            for ks in range(20, 24):
                wq_dma(ks)
            E("WAIT vm=prep")
            for i in range(4):
                E(f"ds_read_b64_tr_b16 {vr(64+4*i,2)}, v28 offset:{(4+i)*1024}",
                  f"ds_read_b64_tr_b16 {vr(66+4*i,2)}, v29 offset:{(4+i)*1024}")
            E("WAIT vm=wq3")
            for ks in range(4):
                E(trq(ks))
            E("WAIT lg=0")
            for ks in range(24, 32):
                wq_dma(ks)
            for i in range(4):
                E(f"v_mfma_f32_16x16x32_bf16 v[96:99], {vr(64+4*i,4)}, v[108:111], {'0' if i == 0 else 'v[96:99]'}",
                  f"buffer_store_dwordx4 {vr(64+4*i,4)}, {vL}, {WS}, {sPD} offen offset:{i*1024} sc1")
            E("v_lshrrev_b32 v100, 8, v1", "v_lshlrev_b32 v100, 4, v100",
              f"buffer_store_dwordx4 v[96:99], v100, {WS}, {T[6]} offen sc1")
        E("v_mov_b32 v84, 0", "v_mov_b32 v85, 0")
        D = 4 if first else 6
        def rd(ks):
            L = []
            if first and ks >= 4:
                if ks % 4 == 0:
                    L.append(f"WAIT vm=wq{ks+3}")
                L += trq(ks)
            L.append(f"ds_read_b128 {vr(48+4*(ks%8),4)}, {vXB} offset:{ks*32} ;@qb{ks}")
            return L
        def kvflag():
            E(f"s_add_u32 {T[7]}, {sF}, {sXCC}", f"v_mov_b32 v86, {T[7]}", f"s_mov_b64 exec, {sW0}", "WAIT vm=kvst",
              f"buffer_store_dword v86, off, {WS}, {T[9]} sc1 ;@opt", "s_mov_b64 exec, -1")
        for ks in range(D):
            E(rd(ks))
        for ks in range(32):
            E(f"WAIT lg=qb{ks}")
            E(f"v_mfma_f32_32x32x16_bf16 v[32:47], {vr(R+4*ks,4)}, {vr(48+4*(ks%8),4)}, {'0' if ks == 0 else 'v[32:47]'}")
            if first and ks + D == 20:
                kvflag()
            if ks + D < 32:
                E(rd(ks + D))
            elif ks + D == 32:
                E(f"ds_read_b128 {vr(RES,4)}, v122", f"ds_read_b128 {vr(RES+4,4)}, v122 offset:32",
                  "ds_read2_b32 v[88:89], v123 offset1:32")
            E([f"v_dot2c_f32_bf16 v{84+(r&1)}, {sONE}, v{R+4*ks+r}" for r in range(4)])
        E("v_add_f32 v84, v84, v85", "v_mov_b32 v85, v84", "v_permlane32_swap_b32 v84, v85", "v_add_f32 v84, v84, v85",
          "ds_write_b32 v124, v84")
        E([f"ds_read_b128 {vr(96+4*a,4)}, v125 offset:{a*32}" for a in range(4)])
        if first:
            E(f"s_lshl_b32 {T[4]}, {sG}, 3", f"s_add_u32 {T[4]}, {T[4]}, {sRB}",
              f"s_lshl2_add_u32 {T[5]}, {sCQ}, {sW}", f"s_lshl_b32 {T[5]}, {T[5]}, 5", f"s_add_u32 {T[5]}, {T[5]}, {T[4]}",
              f"s_lshl_b32 {T[5]}, {T[5]}, 10", f"s_add_u32 {T[5]}, {T[5]}, {WQF}",
              f"s_cmp_lt_u32 {T[4]}, 32", f"s_cselect_b32 {T[5]}, {T[5]}, 0x20000000",
              f"s_and_b32 {T[4]}, {T[4]}, 31", f"s_lshl_b32 {T[4]}, {T[4]}, 2",
              f"s_set_gpr_idx_on {T[4]}, gpr_idx(SRC0)")
            E([f"v_mov_b32 v{64+i}, v{R+i}" for i in range(4)])
            E("s_set_gpr_idx_off", f"buffer_store_dwordx4 v[64:67], {vL}, {WS}, {T[5]} offen sc1")
        else:
            kvflag()
        E("WAIT lg=0", f"v_mul_f32 v89, {f2u(0.25*1.4426950408889634)}, v89")
        for i in range(8):
            E(f"v_pk_fma_f32 {vr(32+2*i,2)}, {vr(96+2*i,2)}, v[88:89], {vr(32+2*i,2)} op_sel_hi:[1,0,1] neg_lo:[0,1,0] neg_hi:[0,1,0]")
        for i in range(8):
            E(f"v_pk_mul_f32 {vr(32+2*i,2)}, {vr(32+2*i,2)}, v[88:89] op_sel:[0,1]")
        for i in range(8):
            E(f"v_cvt_pk_bf16_f32 v{Q+i}, v{32+2*i}, v{33+2*i}")

    p1_addr()
    p1(True)

    S = [32, 48]; O = [64, 80]; KF = [96, 100]; VL = [104, 108]; VH = [112, 116]
    E("LAYER:")
    stamp()
    E("s_barrier")
    E("v_bfe_u32 v96, v1, 4, 4", f"v_mul_u32_u24 v96, {TS}, v96", f"v_add_u32 v96, {RING+2048}, v96")
    E([f"v_mov_b32 v{100+i}, {sONE}" for i in range(4)])
    E("ds_write_b128 v96, v[100:103]")
    E([f"v_mov_b32 v{64+i}, 0" for i in range(32)])
    E(f"s_lshl_b32 {T[0]}, {sW}, 12", f"s_add_u32 {T[0]}, {T[0]}, {sKV}", f"v_add_u32 v126, {T[0]}, v1",
      f"s_lshl_b32 {sCH}, {sG}, 14",
      f"s_and_b32 {T[0]}, {sW}, 1", f"s_lshl_b32 {T[0]}, {T[0]}, 8", f"v_xor_b32 v124, {T[0]}, v1",
      f"s_and_b32 {T[1]}, {sC}, 15", f"s_mul_i32 {sM0W}, {sW}, 28672", f"s_mul_i32 {sA1}, {T[1]}, 114688",
      f"s_add_u32 {sA1}, {sA1}, {sM0W}", f"s_add_u32 {sA1}, {sA1}, {W1F}",
      f"s_mul_i32 {T[1]}, {T[1]}, 112", f"s_lshl_b32 {T[0]}, {sW}, 5", f"s_add_u32 {T[1]}, {T[1]}, {T[0]}",
      "v_bfe_u32 v125, v1, 4, 5", f"v_add_u32 v125, {T[1]}, v125", "v_lshlrev_b32 v127, 2, v125", "v_lshlrev_b32 v125, 1, v125",
      f"s_and_b32 {T[0]}, {sC}, 7", f"s_lshl_b32 {T[0]}, {T[0]}, 1", f"s_lshr_b32 {T[1]}, {sW}, 1", f"s_add_u32 {T[0]}, {T[0]}, {T[1]}",
      f"s_xor_b32 {T[1]}, {T[0]}, 1", f"s_mul_i32 {sA2a}, {T[0]}, 114688", f"s_mul_i32 {sA2b}, {T[1]}, 114688",
      f"s_add_u32 {T[0]}, {sM0W}, {W2F}", f"s_add_u32 {sA2a}, {sA2a}, {T[0]}", f"s_add_u32 {sA2b}, {sA2b}, {T[0]}",
      f"s_lshl2_add_u32 {sAO}, {sCQ}, {sW}", f"s_lshl_b32 {sAO}, {sAO}, 15", f"s_add_u32 {sAO}, {sAO}, {WOF}",
      f"s_lshl_b32 {T[0]}, {sG}, 7", f"s_add_u32 {T[0]}, {T[0]}, {sKVF}", "v_bfe_u32 v121, v1, 2, 7",
      f"s_lshl_b32 {T[2]}, s2, 2", f"s_add_u32 {T[2]}, {T[2]}, {PREPF}", f"s_mov_b32 {T[3]}, {PREPF}")
    poll("v121", T[0], rng=True, inv=False)
    def kv_dma(slot):
        L = []
        for k in range(4):
            pre = []
            if k % 2 == 0:
                pre = [f"s_add_u32 m0, {sM0K}, {slot*SLOT + (k>>1)*16}"]
            L.append((pre, f"buffer_load_dwordx4 v126, {WS}, {sCH} offen offset:{k*1024} sc1 lds ;@kv"))
        return L
    adv = [f"s_add_u32 {sCH}, {sCH}, 0x4000", f"s_and_b32 {sCH}, {sCH}, 0x1ffff"]
    for pre, x in kv_dma(0):
        E(pre, x)
    E(adv)
    E(f"v_cmp_ne_u32 vcc, {sXCC}, v120", "s_cmp_lg_u64 vcc, 0", f"s_cselect_b32 {sSAFE}, 1, {o['force_safe']}")
    stamp()
    E("WAIT vm=0 lg=0", "s_barrier")
    E(f"ds_read_b128 {vr(KF[0],4)}, {vK}", f"ds_read_b128 {vr(VL[0],4)}, {vVlo}", f"ds_read_b128 {vr(VH[0],4)}, {vVhi}")
    E(f"s_mov_b64 exec, {sW0}", f"buffer_store_dword {vF}, off, {WS}, {T[2]} sc1 ;@opt", "s_mov_b64 exec, -1")
    E("WAIT lg=0")
    stamp()
    def QK(t):
        return f"v_mfma_f32_32x32x16_bf16 {vr(S[t&1],16)}, {vr(KF[(t>>1)&1],4)}, {vr(Q+4*(t&1),4)}, 0"
    def PV(t, hi):
        v = (VH if hi else VL)[(t>>1)&1]
        return f"v_smfmac_f32_32x32x32_bf16 {vr(O[t&1],16)}, {vr(v,4)}, {vr(S[t&1]+8*hi,8)}, {vIDX}"
    W = []
    for i in range(28):
        pre = []
        if i % 4 == 0 and i:
            pre += [f"s_add_u32 {sA1}, {sA1}, 4096", f"s_add_u32 {sM0W}, {sM0W}, 4096"]
        W.append((pre, f"buffer_load_dwordx4 {vL}, {WS}, {sA1} offen offset:{(i&3)*1024} sc1 lds", "m0w"))
    for i in range(32):
        pre = [f"s_add_u32 {sAO}, {sAO}, 4096"] if (i % 4 == 0 and i) else []
        W.append((pre, f"buffer_load_dwordx4 {vr(R+4*i,4)}, {vL}, {WS}, {sAO} offen offset:{(i&3)*1024} sc1", None))
    for i in range(4):
        W.append(([f"s_mov_b32 {T[4]}, {CS1+i*7168}"], f"buffer_load_dword v{28+i}, v127, {WS}, {T[4]} offen sc1", None))
    W.append(([], f"buffer_load_ushort v127, v125, {SC}, 0 offen", None))
    for ct in range(2):
        s = sA2b if ct else sA2a
        for i in range(28):
            pre = [f"s_add_u32 {s}, {s}, 4096"] if (i % 4 == 0 and i) else []
            W.append((pre, f"buffer_load_dwordx4 {ar((i*2+ct)*4,4)}, v124, {WS}, {s} offen offset:{(i&3)*1024} sc1", None))
    pos = {(t, p): [] for t in range(128) for p in range(3)}
    def prevpos(t, p):
        return (t, p-1) if p else (t-1, 2)
    used = set()
    m0state = [None]
    def place(t, p, pre, ins, m0=None):
        pre = list(pre)
        if m0 == "m0w" and (m0state[0] != "w" or pre):
            pre.append(f"s_mov_b32 m0, {sM0W}"); m0state[0] = "w"
        pos[prevpos(t, p)] += pre
        pos[(t, p)].append(ins)
        used.add((t, p))
    def check(regs4, limit, soff):
        rt = P.lab("RETRY"); bk = P.lab("BACK"); fl = P.lab("RFAIL")
        b = regs4
        chk = [f"v_sad_u32 v{b}, v{b}, {vF}, 0"] + [f"v_sad_u32 v{b}, v{b+i}, {vF}, v{b}" for i in (1, 2, 3)] + \
              [f"v_cmp_lt_u32 vcc, {limit}, v{b}"]
        P.out_of_line(f"{rt}:", f"buffer_load_dwordx4 {vr(b,4)}, {vL}, {WS}, {soff} offen sc1",
                      f"s_sub_u32 {sBUD}, {sBUD}, 1", f"s_cbranch_scc1 {fl}", "s_waitcnt vmcnt(0)", chk,
                      f"s_cbranch_vccnz {rt}", f"s_branch {bk}",
                      f"{fl}:", f"s_mov_b32 {sBUD}, 0", "s_waitcnt vmcnt(0)", f"s_branch {bk}")
        return chk + [f"s_cbranch_vccnz {rt}", f"{bk}:"]
    for j in range(63):
        ch = (j + 1) >> 3; tl = (j + 1) & 7; off = (ch & 1)*SLOT + tl*TS; b = (j + 1) & 1
        pos[(2*j, 0)].append(f"ds_read_b128 {vr(KF[b],4)}, {vK} offset:{off} ;@kf")
        pos[(2*j, 1)].append(f"ds_read_b128 {vr(VL[b],4)}, {vVlo} offset:{off}")
        pos[(2*j, 2)].append(f"ds_read_b128 {vr(VH[b],4)}, {vVhi} offset:{off}")
        pos[(2*j+1, 0)].append("WAIT lg=kf")
        if j % 8 == 6 and j < 62:
            pos[(2*j+1, 2)] += ["WAIT vm=kv lg=0", "s_barrier"]
        else:
            pos[(2*j+1, 2)].append("WAIT lg=0")
    sched = {}
    sl, sc_ = o["s2_load"], o["s2_chk"]
    sched[(sl, 0)] = ([], f"buffer_load_dwordx4 v[120:123], {vL}, {WS}, {sKVF} offen sc1 ;@f2", None)
    pos[(sc_-1, 2)] += ["WAIT vm=f2"] + check(120, 63, sKVF)
    kd = kv_dma(1)
    for k, q in enumerate([(sc_, 0), (sc_, 1), (sc_, 2), (sc_+2, 0)]):
        sched[q] = (kd[k][0], kd[k][1], "kv")
    pos[(sc_+2, 1)] += adv
    sched[(o["pf_load"], 0)] = ([], f"buffer_load_dwordx4 v[120:123], {vL}, {WS}, {T[3]} offen sc1 ;@f3", None)
    pos[(o["pf_chk"]+1, 2)] += ["WAIT vm=f3"] + check(120, 0, T[3])
    for i in range(6):
        kd = kv_dma(i & 1)
        for k, q in enumerate([(16*i+13, 2), (16*i+15, 0), (16*i+15, 1), (16*i+15, 2)]):
            sched[q] = (kd[k][0], kd[k][1], "kv")
        pos[(16*i+16, 0)] += adv
    wi = 0
    for t in range(1, 128, 2):
        for p in range(3):
            if (t, p) in sched:
                pre, ins, k = sched[(t, p)]
                place(t, p, pre, ins)
                if k == "kv":
                    m0state[0] = "kv"
            elif t > o["pf_chk"] + 2 and wi < len(W):
                place(t, p, *W[wi]); wi += 1
    assert wi == len(W), wi
    E(QK(0))
    for t in range(128):
        e = [f"v_exp_f32 v{S[t&1]+i}, v{S[t&1]+i}" for i in range(16)]
        E(e[0:2])
        if t:
            E(PV(t-1, 1))
        E(pos[(t, 0)], e[2:5])
        if t < 127:
            E(QK(t+1))
        E(pos[(t, 1)], e[5:11], PV(t, 0), pos[(t, 2)], e[11:16])
    E(f"s_lshl2_add_u32 {T[1]}, {sCQ}, {sW}", f"s_lshl_b32 {T[0]}, {sRB}, 4", PV(127, 1))
    LO = f2u(2.0**-60); HI = f2u(2.0**60)
    E(f"s_add_u32 {T[1]}, {T[1]}, {T[0]}",
      f"s_lshl_b32 {T[0]}, {T[1]}, 11", f"s_add_u32 {T[0]}, {T[0]}, {sGR}",
      f"s_lshl_b32 {T[6]}, {T[1]}, 8", f"s_add_u32 {T[6]}, {T[6]}, {sGR}", f"s_add_u32 {T[6]}, {T[6]}, {G_ST}",
      f"s_lshl2_add_u32 {T[1]}, {T[1]}, {sFL}",
      f"v_subrev_u32 v120, {LO}, v{O[0]+8}", f"s_mov_b32 {T[4]}, {HI-LO}",
      f"v_subrev_u32 v121, {LO}, v{O[1]+8}", "v_max_u32 v120, v120, v121", f"v_cmp_lt_u32 vcc, {T[4]}, v120")
    if o["force_slow"]:
        E("s_branch SLOW")
    E("s_cbranch_vccnz SLOW", "SLOWD:")
    stamp()
    for h in range(2):
        E(f"v_rcp_f32 v{O[h]+8}, v{O[h]+8}")
    for h in range(2):
        E([f"v_pk_mul_f32 {vr(O[h]+2*i,2)}, {vr(O[h]+2*i,2)}, {vr(O[h]+8,2)} op_sel_hi:[1,0]" for i in range(4)])
        E([f"v_cvt_pk_bf16_f32 v{O[h]+i}, v{O[h]+2*i}, v{O[h]+2*i+1}" for i in range(4)])
        E(f"buffer_store_dwordx4 {vr(O[h],4)}, {vL}, {WS}, {T[0]} offen offset:{h*1024} ;@ost")
    sl_ = ["SLOW:", "v_mov_b32 v121, 0xff800000", "v_mov_b32 v122, 0xff800000", f"s_mov_b32 {T[4]}, {sKV}", f"s_mov_b32 {T[5]}, 64",
           "SLOW1:", f"buffer_load_dwordx4 {vr(KF[0],4)}, {vL}, {WS}, {T[4]} offen sc1", "s_waitcnt vmcnt(0)", QK(0), QK(1)]
    for h in range(2):
        sl_ += [f"v_max3_f32 v{121+h}, v{S[h]+2*i}, v{S[h]+2*i+1}, v{121+h}" for i in range(8)]
    sl_ += [f"s_add_u32 {T[4]}, {T[4]}, 2048", f"s_sub_u32 {T[5]}, {T[5]}, 1", f"s_cmp_lg_u32 {T[5]}, 0", "s_cbranch_scc1 SLOW1"]
    for h in range(2):
        sl_ += [f"v_mov_b32 v123, v{121+h}", f"v_permlane32_swap_b32 v{121+h}, v123", f"v_max_f32 v{121+h}, v{121+h}, v123"]
    sl_ += [f"v_mov_b32 v{64+i}, 0" for i in range(32)]
    sl_ += ["v_lshrrev_b32 v120, 9, v1", "v_and_b32 v123, 0xf0, v1", "v_lshl_add_u32 v123, v120, 8, v123",
            "v_and_b32 v120, 0x100, v1", "v_cmp_ne_u32 vcc, 0, v120", f"v_mov_b32 v120, {sONE}",
            f"s_mov_b32 {T[4]}, {sKV}", f"s_mov_b32 {T[5]}, 64",
            "SLOW2:", f"buffer_load_dwordx4 {vr(KF[0],4)}, {vL}, {WS}, {T[4]} offen sc1",
            f"buffer_load_dwordx4 {vr(VL[0],4)}, v123, {WS}, {T[4]} offen offset:1024 sc1",
            f"buffer_load_dwordx4 {vr(VH[0],4)}, v123, {WS}, {T[4]} offen offset:1536 sc1", "s_waitcnt vmcnt(0)", QK(0), QK(1)]
    sl_ += [f"v_cndmask_b32 v{b+i}, v{b+i}, v120, vcc" for b in (VL[0], VH[0]) for i in range(4)]
    for h in range(2):
        sl_ += [f"v_sub_f32 v{S[h]+i}, v{S[h]+i}, v{121+h}" for i in range(16)]
        sl_ += [f"v_exp_f32 v{S[h]+i}, v{S[h]+i}" for i in range(16)]
    sl_ += [PV(0, 0), PV(0, 1), PV(1, 0), PV(1, 1), "s_nop 7", "s_nop 7",
            f"s_add_u32 {T[4]}, {T[4]}, 2048", f"s_sub_u32 {T[5]}, {T[5]}, 1", f"s_cmp_lg_u32 {T[5]}, 0", "s_cbranch_scc1 SLOW2",
            "s_branch SLOWD"]
    P.out_of_line(sl_)

    for i in range(8):
        E(f"v_lshlrev_b32 v{32+2*i}, 16, v{RES+i}", f"v_and_b32 v{33+2*i}, {sHI}, v{RES+i}")
    E("WAIT vm=2", "v_add_f32 v28, v28, v29", "v_add_f32 v30, v30, v31", "v_lshlrev_b32 v127, 16, v127", "v_add_f32 v28, v28, v30",
      f"s_lshl_b32 {T[4]}, {sW}, 8", f"s_add_u32 {T[4]}, {T[4]}, {L_TB}",
      "v_bfe_u32 v29, v1, 6, 3", f"v_lshl_add_u32 v29, v29, 5, {T[4]}", "v_bfe_u32 v30, v1, 4, 2", "v_lshl_add_u32 v29, v30, 2, v29",
      "ds_write2_b32 v29, v28, v127 offset1:4")
    E(f"s_lshl_b32 {T[2]}, {sRB}, 6", f"s_add_u32 {T[2]}, {T[2]}, {sFL}", "v_bfe_u32 v121, v1, 2, 6",
      f"s_lshl_b32 {T[3]}, {sRB}, 4", f"s_add_u32 {T[3]}, {T[3]}, {sW}", f"s_lshl_b32 {T[3]}, {T[3]}, 11", f"s_add_u32 {T[3]}, {T[3]}, {sGR}",
      f"s_lshl_b32 {T[4]}, {sW}, 11", f"s_add_u32 {T[4]}, {T[4]}, {RING}",
      "v_and_b32 v122, 0xf0, v1", "v_bfe_u32 v123, v1, 8, 1", "v_lshl_add_u32 v122, v123, 3, v122",
      "v_lshrrev_b32 v123, 9, v1", "v_lshl_add_u32 v122, v123, 2, v122",
      "v_mov_b32 v88, 0", "v_mov_b32 v89, 0")
    publish(T[1], F_O)
    stamp()
    E(f"s_mov_b32 m0, {T[4]}")
    poll("v121", T[2], F_O)
    for s in range(4):
        if s:
            E(f"s_add_u32 m0, {T[4]}, {s*8192}", f"s_add_u32 {T[3]}, {T[3]}, 8192")
        E([f"buffer_load_dwordx4 {vL}, {WS}, {T[3]} offen offset:{k*1024} sc1 lds ;@o{s}" for k in range(2)])
    stamp()
    D = 4
    def rdo(ks):
        L = []
        if ks % 8 == 0:
            L += [f"WAIT vm=o{ks//8}" + (" lg=0" if ks == 0 else ""), "s_barrier"]
        L.append(f"ds_read_b128 {vr(48+4*(ks%8),4)}, {vK} offset:{ks*1024} ;@ob{ks}")
        return L
    for ks in range(D):
        E(rdo(ks))
    for ks in range(32):
        E(f"WAIT lg=ob{ks}", f"v_mfma_f32_32x32x16_bf16 v[32:47], {vr(R+4*ks,4)}, {vr(48+4*(ks%8),4)}, v[32:47]")
        if ks + D < 32:
            E(rdo(ks + D))
    E(f"s_add_u32 {T[0]}, {T[0]}, {G_X1}")
    E(f"s_lshr_b32 {T[5]}, {sC}, 4", f"s_lshl2_add_u32 {T[5]}, {T[5]}, {sW}",
      f"s_lshl_b32 {T[2]}, {T[5]}, 6", f"s_add_u32 {T[2]}, {T[2]}, {sFL}",
      f"s_lshl_b32 {T[3]}, {T[5]}, 15", f"s_add_u32 {T[3]}, {T[3]}, {sGR}", f"s_add_u32 {T[3]}, {T[3]}, {G_X1}",
      f"s_lshl_b32 {T[4]}, {T[5]}, 12", f"s_add_u32 {T[4]}, {T[4]}, {sGR}", f"s_add_u32 {T[4]}, {T[4]}, {G_ST}")
    for h in range(2):
        E([f"v_cvt_pk_bf16_f32 v{80+4*h+i}, v{32+8*h+2*i}, v{33+8*h+2*i}" for i in range(4)])
        E(f"buffer_store_dwordx4 {vr(80+4*h,4)}, {vL}, {WS}, {T[0]} offen offset:{h*1024}")
    for i in range(8):
        E(f"v_dot2c_f32_bf16 v88, {sONE}, v{80+i}", f"v_dot2c_f32_bf16 v89, v{80+i}, v{80+i}")
    E("v_permlane32_swap_b32 v88, v89", "v_add_f32 v88, v88, v89", f"buffer_store_dword v88, v122, {WS}, {T[6]} offen")

    AR = 88
    def a1(t, ks, slot):
        off = (t*16 + ks)*1024
        if off < 65536:
            return f"ds_read_b128 {vr(AR+4*slot,4)}, {vL} offset:{off} ;@a{t}_{ks}"
        return f"ds_read_b128 {vr(AR+4*slot,4)}, v124 offset:{off-65536} ;@a{t}_{ks}"
    E("v_add_u32 v124, 0x10000, v1",
      "v_lshrrev_b32 v123, 8, v1", "v_and_b32 v125, 0xf0, v1", "v_lshl_add_u32 v126, v123, 10, v125", "v_lshl_add_u32 v125, v123, 9, v125",
      f"v_lshlrev_b32 v123, 5, v123", f"v_add_u32 v123, {L_TB}, v123",
      f"s_and_b32 {T[7]}, {sC}, 15", f"s_lshl2_add_u32 {T[8]}, {T[7]}, {T[2]}",
      f"s_mul_i32 {T[7]}, {T[7]}, 7168", f"s_mul_i32 {T[5]}, {T[5]}, 114688", f"s_add_u32 {T[7]}, {T[7]}, {T[5]}",
      f"s_add_u32 {T[7]}, {T[7]}, {sGR}", f"s_add_u32 {T[7]}, {T[7]}, {G_H}",
      f"s_lshl2_add_u32 {T[9]}, {sCQ}, {sW}", f"s_lshl_b32 {T[9]}, {T[9]}, 15", f"s_add_u32 {T[9]}, {T[9]}, {WQF}",
      f"s_cmp_eq_u32 {sLAY}, 0", f"s_cselect_b32 {T[9]}, {T[9]}, 0x20000000")
    publish(T[1], F_X1)
    stamp()
    E([a1(t, 0, t) for t in range(4)])
    poll("v121", T[2], F_X1)
    E([f"buffer_load_dwordx4 {vr(12+4*i,4)}, v126, {WS}, {T[4]} offen offset:{i*256} sc1 ;@sts" for i in range(4)])
    for ks in range(16):
        if ks and ks % 2 == 0:
            E(f"s_add_u32 {T[3]}, {T[3]}, 4096")
        E([f"buffer_load_dwordx4 {vr(R+8*ks+4*u,4)}, v125, {WS}, {T[3]} offen offset:{(ks&1)*2048+u*256} sc1 ;@x{ks}" for u in range(2)])
    stamp()
    def acc(t, u):
        return 32 + 8*t + 4*u
    def m1(t, ks, u, slot):
        d = vr(acc(t, u), 4)
        return f"v_mfma_f32_16x16x32_bf16 {d}, {vr(AR+4*slot,4)}, {vr(R+8*ks+4*u,4)}, {'0' if ks == 0 else d}"
    st = []
    st += ["v_pk_add_f32 v[12:13], v[12:13], v[16:17]", "v_pk_add_f32 v[14:15], v[14:15], v[18:19]",
           "v_pk_add_f32 v[20:21], v[20:21], v[24:25]", "v_pk_add_f32 v[22:23], v[22:23], v[26:27]",
           "v_pk_add_f32 v[12:13], v[12:13], v[20:21]", "v_pk_add_f32 v[14:15], v[14:15], v[22:23]"]
    for sw in ("v_permlane32_swap_b32", "v_permlane16_swap_b32"):
        st += [f"v_mov_b32 v{16+i}, v{12+i}" for i in range(4)]
        st += [f"{sw} v{12+i}, v{16+i}" for i in range(4)]
        st += ["v_pk_add_f32 v[12:13], v[12:13], v[16:17]", "v_pk_add_f32 v[14:15], v[14:15], v[18:19]"]
    st += [f"v_mul_f32 v{12+i}, {f2u(1/512)}, v{12+i}" for i in range(4)]
    st += ["v_fma_f32 v13, -v12, v12, v13", "v_fma_f32 v15, -v14, v14, v15", "v_max_f32 v13, 0, v13", "v_max_f32 v15, 0, v15",
           f"v_add_f32 v13, {f2u(1e-5)}, v13", f"v_add_f32 v15, {f2u(1e-5)}, v15", "v_rsq_f32 v28, v13", "v_rsq_f32 v30, v15",
           "v_mul_f32 v29, -v12, v28", "v_mul_f32 v31, -v14, v30"]
    def gelu(t):
        L = [f"ds_read_b128 v[112:115], v123 offset:{t*128}", f"ds_read_b128 v[116:119], v123 offset:{t*128+16} ;@tb", "WAIT lg=tb"]
        pr = [(acc(t, u) + 2*k, 28 + 2*u, k, 12 + 4*u + 2*k) for u in range(2) for k in range(2)]
        L += [f"v_pk_fma_f32 {vr(a,2)}, {vr(a,2)}, {vr(s,2)}, {vr(116+2*k,2)} op_sel_hi:[1,0,1]" for a, s, k, x in pr]
        L += [f"v_pk_fma_f32 {vr(a,2)}, {vr(112+2*k,2)}, {vr(s,2)}, {vr(a,2)} op_sel:[0,1,0]" for a, s, k, x in pr]
        L += [f"v_pk_mul_f32 {vr(x,2)}, {vr(a,2)}, {vr(a,2)}" for a, s, k, x in pr]
        L += [f"v_pk_fma_f32 {vr(x,2)}, {vr(x,2)}, {sGC}, {sGC} op_sel:[0,0,1] op_sel_hi:[1,0,1]" for a, s, k, x in pr]
        L += [f"v_pk_mul_f32 {vr(x,2)}, {vr(x,2)}, {vr(a,2)}" for a, s, k, x in pr]
        L += [f"v_exp_f32 v{12+i}, v{12+i}" for i in range(8)]
        L += [f"v_pk_add_f32 {vr(x,2)}, {vr(x,2)}, 1.0 op_sel_hi:[1,0]" for a, s, k, x in pr]
        L += [f"v_rcp_f32 v{12+i}, v{12+i}" for i in range(8)]
        L += [f"v_pk_mul_f32 {vr(a,2)}, {vr(a,2)}, {vr(x,2)}" for a, s, k, x in pr]
        ob = 20 + 4*(t & 1)
        L += [f"v_cvt_pk_bf16_f32 v{ob+i}, v{acc(t,0)+2*i}, v{acc(t,0)+2*i+1}" for i in (0, 2, 1, 3)]
        L += ["s_nop 0", f"v_permlane16_swap_b32 v{ob}, v{ob+2}", f"v_permlane16_swap_b32 v{ob+1}, v{ob+3}"]
        if t == 4:
            L.append(f"s_add_u32 {T[7]}, {T[7]}, 4096")
        L.append(f"buffer_store_dwordx4 {vr(ob,4)}, {vL}, {WS}, {T[7]} offen offset:{(t&3)*1024}")
        return L
    fill = list(st)
    E("WAIT vm=sts")
    for ks in range(16):
        b = (ks & 1)*4
        nxt = [a1(t, ks+1, 4-b+t) for t in range(4)] if ks < 15 else [a1(4+t, 0, t) for t in range(3)]
        E(f"WAIT vm=x{ks} lg=0")
        for t in range(4):
            for u in range(2):
                E(m1(t, ks, u, b+t))
                if u == 0 and nxt:
                    E(nxt.pop(0))
                elif fill:
                    E(fill.pop(0))
                    if fill:
                        E(fill.pop(0))
    assert not fill
    fill = []
    for t in range(4):
        fill += gelu(t)
    per = -(-len(fill) // 90)
    for ks in range(16):
        b = (ks & 1)*3
        nxt = [a1(4+t, ks+1, 3-b+t) for t in range(3)] if ks < 15 else []
        wq = []
        if ks:
            k = 2*(ks-1)
            wq = [f"buffer_load_dwordx4 {vr(R+4*(k+i),4)}, {vL}, {WS}, {T[9]} offen offset:{((k+i)&3)*1024} sc1" for i in range(2)]
            if k % 4 == 2:
                wq[1] = [wq[1], f"s_add_u32 {T[9]}, {T[9]}, 4096"]
        E(f"WAIT lg=a6_{ks}")
        for t in range(3):
            for u in range(2):
                E(m1(4+t, ks, u, b+t))
                if u == 0 and nxt:
                    E(nxt.pop(0))
                if u == 1 and wq:
                    E(wq.pop(0))
                if ks or t:
                    for _ in range(per):
                        if fill:
                            E(fill.pop(0))
    E(fill)
    E([f"buffer_load_dwordx4 {vr(R+4*(30+i),4)}, {vL}, {WS}, {T[9]} offen offset:{(2+i)*1024} sc1" for i in range(2)])
    for t in range(4, 7):
        E(gelu(t))

    E(f"s_lshr_b32 {T[0]}, {sC}, 3", f"s_and_b32 {T[1]}, {sC}, 7", f"s_lshl2_add_u32 {T[1]}, {T[1]}, {sW}",
      f"s_lshl_b32 {T[2]}, {T[0]}, 7", f"s_add_u32 {T[2]}, {T[2]}, {sFL}",
      f"s_lshl_b32 {T[3]}, {sW}, 4", f"s_add_u32 {T[3]}, {T[3]}, {T[2]}",
      "v_bfe_u32 v121, v1, 6, 1", "v_bfe_u32 v122, v1, 2, 4", "v_lshl_add_u32 v121, v121, 6, v122",
      f"s_mul_i32 {T[4]}, {T[0]}, {2*114688}", f"s_mul_i32 {T[5]}, {sW}, 28672", f"s_add_u32 {T[4]}, {T[4]}, {T[5]}",
      f"s_add_u32 {T[4]}, {T[4]}, {sGR}", f"s_add_u32 {T[4]}, {T[4]}, {G_H}",
      f"s_lshl_b32 {T[5]}, {T[0]}, 16", f"s_lshl_b32 {T[6]}, {T[1]}, 10", f"s_add_u32 {T[5]}, {T[5]}, {T[6]}",
      f"s_add_u32 {T[5]}, {T[5]}, {sGR}", f"s_add_u32 {T[5]}, {T[5]}, {G_X1}", f"s_add_u32 {T[6]}, {T[5]}, 0x8000",
      f"s_lshl2_add_u32 {T[7]}, {sG}, {T[0]}", f"s_lshl_b32 {T[7]}, {T[7]}, 16", f"s_lshl_b32 {T[9]}, {T[1]}, 5",
      f"s_add_u32 {T[7]}, {T[7]}, {T[9]}",
      f"s_lshl2_add_u32 {T[1]}, {T[1]}, {T[2]}",
      f"v_bfe_u32 {vXB}, v1, 4, 5", "v_lshrrev_b32 v122, 9, v1", "v_lshlrev_b32 v122, 4, v122", f"v_lshl_add_u32 {vXB}, {vXB}, 10, v122",
      f"s_lshl_b32 {T[9]}, {sW}, 11", f"v_add_u32 v31, {T[9]}, v1")
    E([f"v_xor_b32 v{27+p}, {p*2048}, v31" for p in (1, 2, 3)])
    E([f"v_add_u32 v{28+p}, {RING}, v{28+p}" for p in range(4)])
    publish(T[8], F_H)
    stamp()
    E([f"v_accvgpr_read_b32 v{88+i}, a{AB2+i}" for i in range(4)])
    for i in range(4):
        E(f"v_lshlrev_b32 v{80+2*i}, 16, v{88+i}", f"v_and_b32 v{81+2*i}, {sHI}, v{88+i}")
    E([f"v_mov_b32 v{40+i}, 0" for i in range(8)], [f"v_mov_b32 v{72+i}, 0" for i in range(8)])
    poll("v121", T[3], F_H)
    E(f"buffer_load_dwordx4 v[88:91], {vL}, {WS}, {T[5]} offen sc1 ;@r0", f"buffer_load_dwordx4 v[92:95], {vL}, {WS}, {T[6]} offen sc1 ;@r1")
    LR = [96+4*i for i in range(8)] + [12+4*i for i in range(4)]
    NL = len(LR)
    def hl(n):
        u, ks = divmod(n, 28)
        L = []
        if n and ks % 4 == 0:
            L.append(f"s_add_u32 {T[4]}, {T[4]}, {4096 if ks else 114688-6*4096}")
        L.append(f"buffer_load_dwordx4 {vr(LR[n%NL],4)}, {vL}, {WS}, {T[4]} offen offset:{(ks&3)*1024} sc1 ;@h{n}")
        return L
    for n in range(NL):
        E(hl(n))
    stamp()
    def resid(u):
        L = []
        for i in range(4):
            L += [f"v_lshlrev_b32 v{32+32*u+2*i}, 16, v{88+4*u+i}", f"v_and_b32 v{33+32*u+2*i}, {sHI}, v{88+4*u+i}"]
        L += [f"v_pk_add_f32 {vr(32+32*u+2*i,2)}, {vr(32+32*u+2*i,2)}, {vr(80+2*i,2)}" for i in range(4)]
        return L
    def red_w(u):
        return [f"ds_write_b128 v{27+p}, {vr(32+32*u+8*p+4*k,4)} offset:{(p-1)*8192+k*1024}" for p in (1, 2, 3) for k in range(2)]
    def red_r(u):
        return [f"ds_read_b128 {vr(32+32*u+8*p+4*k,4)}, v31 offset:{(p-1)*8192+k*1024} ;@rr{p}" for p in (1, 2, 3) for k in range(2)]
    def red_f(u):
        b = 32 + 32*u; L = []
        for p in (1, 2, 3):
            L += [f"WAIT lg=rr{p}"] + [f"v_pk_add_f32 {vr(b+2*i,2)}, {vr(b+2*i,2)}, {vr(b+8*p+2*i,2)}" for i in range(4)]
        L += [f"v_cvt_pk_bf16_f32 v{b+i}, v{b+2*i}, v{b+2*i+1}" for i in range(4)]
        L.append(f"buffer_store_dwordx4 {vr(b,4)}, {vXB}, {OUT}, {T[7]} offen")
        if u == 0:
            L.append(f"s_add_u32 {T[7]}, {T[7]}, 0x8000")
        return L
    E("WAIT vm=r0", resid(0))
    ex = {n: [] for n in range(56)}
    r1 = resid(1)
    for i in range(3):
        ex[1+i] = r1[4*i:4*i+4]
    w = red_w(0)
    for i in range(6):
        ex[30+i] = [w[i]]
    ex[37] = ["WAIT lg=0", "s_barrier"]
    w = red_r(0)
    for i in range(3):
        ex[38+i] = w[2*i:2*i+2]
    w = red_f(0)
    for i in range(5):
        ex[42+i] = w[5*i:5*i+5]
    ex[50] = ["s_barrier"]
    for n in range(56):
        u, ks = divmod(n, 28)
        E(f"WAIT vm=h{n}")
        for ct in range(2):
            d = vr(32+32*u+16*ct, 16)
            E(f"v_mfma_f32_32x32x16_bf16 {d}, {ar((ks*2+ct)*4,4)}, {vr(LR[n%NL],4)}, {'0' if (ks == 0 and ct) else d}")
            if ct == 0:
                E(ex[n])
        if n + NL < 56:
            E(hl(n + NL))
    E(red_w(1), "WAIT lg=0", "s_barrier", red_r(1), red_f(1))
    E(f"s_cmp_lg_u32 {sLAY}, 0", "s_cbranch_scc1 FINAL")
    E("v_bfe_u32 v126, v1, 2, 7", f"s_mov_b32 {T[5]}, {T[1]}", f"s_mov_b32 {T[6]}, {T[2]}",
      f"s_add_u32 {sKV}, {sKV}, 0x20000", f"s_add_u32 {sKVF}, {sKVF}, 1024")
    x_dma_setup()
    publish(T[5], F_X2)
    stamp()
    p1_addr()
    poll("v126", T[6], F_X2)
    x_dma(OUT, " sc1")
    E(f"s_mov_b32 {sLAY}, 1", f"s_add_u32 {sGR}, {sGR}, {8<<21}", f"s_add_u32 {sFL}, {sFL}, {8*2048}",
      "s_mov_b32 s12, s52", "s_mov_b32 s13, s53")
    p1(False)
    E("s_branch LAYER")
    E("FINAL:")
    if o.get("diag_delay"):
        if o.get("diag_safe"):
            E(f"s_cmp_eq_u32 {sSAFE}, 0", "s_cbranch_scc1 DLYD")
        E("s_memtime s[92:93]", "s_waitcnt lgkmcnt(0)", "s_mov_b32 s70, s92", "DLY:", "s_memtime s[92:93]", "s_waitcnt lgkmcnt(0)",
          "s_sub_u32 s71, s92, s70", f"s_cmp_lt_u32 s71, {o['diag_delay']}", "s_cbranch_scc1 DLY", "DLYD:")
    if o.get("diag_rt"):
        stamp()
    if o["debug"]:
        E("s_waitcnt vmcnt(0)")
        stamp()
        E("s_memrealtime s[92:93]", "s_waitcnt lgkmcnt(0)", "v_writelane_b32 v0, s92, 1",
          f"s_lshl2_add_u32 {T[0]}, s2, {sW}", f"s_lshl_b32 {T[0]}, {T[0]}, 8", f"s_add_u32 {T[0]}, {T[0]}, {DBG}",
          f"v_writelane_b32 v0, {sBUD}, 62", f"v_writelane_b32 v0, {sSAFE}, 63",
          "v_lshrrev_b32 v2, 2, v1", f"buffer_store_dword v0, v2, {WS}, {T[0]} offen")
    E(f"s_or_b32 {T[0]}, s2, {sW}", f"s_cmp_lg_u32 {T[0]}, 0", "s_cbranch_scc1 KEXIT",
      "s_mov_b64 exec, 1", f"buffer_store_dword {vF}, off, {WS}, 0 sc1")
    E("KEXIT:", "s_endpgm")
    P.flush_ool()
    E("KEND:")
    body = P.finish()
    ref = open(f"cdna_kernels/{NAME}.s.ref").read().split("\n")
    head = []
    for l in ref:
        if l.startswith("; @launch"):
            l = f"; @launch grid=(256,1,1) block=(256,1,1) lds={LDS_BYTES}"
        head.append(l)
        if l.startswith(NAME + "_kernel:"):
            break
    tail = f""".section .rodata,"a"
.p2align 6
.amdhsa_kernel {NAME}_kernel
  .amdhsa_next_free_vgpr 512
  .amdhsa_next_free_sgpr 102
  .amdhsa_accum_offset 256
  .amdhsa_group_segment_fixed_size 0
  .amdhsa_kernarg_size 104
  .amdhsa_user_sgpr_count 2
  .amdhsa_user_sgpr_kernarg_segment_ptr 1
  .amdhsa_system_sgpr_workgroup_id_x 1
.end_amdhsa_kernel
"""
    return "\n".join(head) + "\n" + body + tail, P


if __name__ == "__main__":
    kw = {}
    out = f"cdna_kernels/{NAME}.s"
    for a in sys.argv[1:]:
        k, v = a.split("=")
        if k == "out":
            out = v
        else:
            kw[k] = int(v)
    s, P = gen(**kw)
    open(out, "w").write(s)
    print("lines", len(P.I), "auto-pad states", P.padded)
```

```python
import sys, struct, os
sys.path.insert(0, os.path.dirname(os.path.abspath(__file__)))
from asmlib import *

NAME = "interleave_layers__grouped_kv_mqa__dense_activation_gelu__prompt"
OPT = dict(debug=0, force_safe=0, force_slow=0, s2_load=1, s2_chk=5, pf_load=9, pf_chk=13)

def f2u(x):
    return struct.unpack("<I", struct.pack("<f", x))[0]

KVF0 = 0x1000; PREPF = 0x2000; GFL0 = 0x4000
CS1 = 0x10000; KV0 = 0x40000; WOF = 0x80000; WQF = 0x100000; W1F = 0x200000; W2F = 0x400000
X2 = 0x600000; GRP0 = 0x800000; DBG = 0x3000000
G_O = 0; G_X1 = 0x40000; G_ST = 0x80000; G_H = 0x100000
LSTEP = 8
F_O = 0; F_X1 = 512; F_H = 1024; F_X2 = 1536
RING = 114688; XT = RING; SLOT = 16512; TS = 2064
MISC = 147968
L_MU = MISC; L_CSQ = MISC + 256; L_TB = MISC + 1024; L_KVP = MISC + 2048; L_CKP = MISC + 6144
LDS_BYTES = 163840
WS = "s[4:7]"; XIN = "s[8:11]"; OUT = "s[12:15]"; SA = "s[16:19]"; SB = "s[20:23]"; SC = "s[24:27]"
sF, sBUD, sLAY, sSAFE = "s28", "s29", "s30", "s31"
sG, sC, sW, sRB, sCQ, sGR, sFL, sKV, sKVF, sXCC, sONE = [f"s{i}" for i in range(58, 69)]
T = [f"s{i}" for i in range(70, 80)]
sA1, sA2a, sA2b, sAO, sCH, sM0K, sM0W = [f"s{i}" for i in range(80, 87)]
sPD = "s87"
sGC = "s[88:89]"
sST = "s90"; sHI = "s91"
sW0 = "s[94:95]"
vL, vIDX, vK, vVlo, vVhi, vF, vXB = "v1", "v2", "v3", "v4", "v5", "v6", "v7"
CK = 8; RES = 12; Q = 20; R = 128
AKV = 224; AB2 = 240


def gen(**kw):
    o = dict(OPT); o.update(kw)
    P = Prog(); E = P

    def stamp():
        if o.get("diag_rt"):
            a = P.lab("DG"); b = P.lab("DGD")
            E(f"s_cmp_eq_u32 {sST}, {o['diag_at']}", f"s_cbranch_scc1 {a}", f"{b}:", f"s_add_u32 {sST}, {sST}, 1")
            P.out_of_line(f"{a}:", "s_memrealtime s[92:93]", "s_waitcnt lgkmcnt(0)", "s_sub_u32 s92, s92, s96",
                          f"s_cmp_lt_u32 s92, {o['diag_rt']}", f"s_cbranch_scc1 {a}", f"s_branch {b}")
        if not o["debug"]:
            return
        E("s_memtime s[92:93]", "s_waitcnt lgkmcnt(0)", f"s_mov_b32 m0, {sST}", "v_writelane_b32 v0, s92, m0",
          f"s_add_u32 {sST}, {sST}, 1")

    def poll(vaddr, soff, imm=0, vt="v120", rng=False, inv=True):
        lp = P.lab("POLL"); dn = P.lab("PDONE"); fl = P.lab("PFAIL")
        E(f"{lp}:", f"buffer_load_dword {vt}, {vaddr}, {WS}, {soff} offen offset:{imm} sc1",
          f"s_sub_u32 {sBUD}, {sBUD}, 1", f"s_cbranch_scc1 {fl}", "s_waitcnt vmcnt(0)")
        if rng:
            E(f"v_sub_u32 {vt}, {vt}, {vF}", f"v_cmp_lt_u32 vcc, 15, {vt}")
        else:
            E(f"v_cmp_ne_u32 vcc, {vt}, {vF}")
        E(f"s_cbranch_vccnz {lp}", f"{dn}:")
        P.out_of_line(f"{fl}:", f"s_mov_b32 {sBUD}, 0", "s_waitcnt vmcnt(0)", f"s_branch {dn}")
        if inv:
            a = P.lab("INV"); b = P.lab("INVD")
            E(f"s_cmp_lg_u32 {sSAFE}, 0", f"s_cbranch_scc1 {a}", f"{b}:")
            P.out_of_line(f"{a}:", "buffer_inv sc1", "s_waitcnt vmcnt(0)", f"s_branch {b}")

    def publish(soff, imm):
        a = P.lab("PUBS"); b = P.lab("PUBD")
        E(f"s_cmp_lg_u32 {sSAFE}, 0", "s_mov_b64 exec, 1", "s_waitcnt vmcnt(0)", f"s_cbranch_scc1 {a}",
          f"buffer_store_dword {vF}, off, {WS}, {soff} offset:{imm}", f"{b}:", "s_mov_b64 exec, -1")
        P.out_of_line(f"{a}:", "buffer_wbl2 sc1", "s_waitcnt vmcnt(0)",
                      f"buffer_store_dword {vF}, off, {WS}, {soff} offset:{imm} sc1", f"s_branch {b}")

    def srd(base, lo, size):
        E(f"s_mov_b32 s{base}, s{lo}", f"s_mov_b32 s{base+1}, s{lo+1}", f"s_mov_b32 s{base+2}, {size}",
          f"s_mov_b32 s{base+3}, 0x20000")

    def x_dma(SRD, sc):
        for i in range(8):
            if i == 4:
                E(f"s_add_u32 {T[0]}, {T[0]}, 4096")
            E(f"s_add_u32 m0, {T[1]}, {(i>>2)*4160 + (i&3)*16}", "s_nop 0",
              f"buffer_load_dwordx4 {vL}, {SRD}, {T[0]} offen offset:{(i&3)*1024}{sc} lds ;@x")

    def x_dma_setup():
        E(f"s_lshl_b32 {T[0]}, {sG}, 3", f"s_add_u32 {T[0]}, {T[0]}, {sRB}", f"s_lshl2_add_u32 {T[0]}, {T[0]}, {sW}",
          f"s_lshl_b32 {T[0]}, {T[0]}, 13",
          f"s_mul_i32 {T[1]}, {sW}, 8320", f"s_add_u32 {T[1]}, {T[1]}, {XT}")

    E("s_cmp_ge_u32 s2, 256", "s_cbranch_scc1 KEXIT")
    E("s_load_dwordx16 s[32:47], s[0:1], 0", "s_load_dwordx8 s[48:55], s[0:1], 64", "s_load_dwordx2 s[56:57], s[0:1], 96")
    if o.get("diag_rt"):
        E("s_memrealtime s[96:97]", f"s_mov_b32 {sST}, 1")
    E("s_getpc_b64 s[70:71]", "PCREF:")
    E("v_lshrrev_b32 v2, 6, v0", "v_lshlrev_b32 v3, 7, v0", f"v_readfirstlane_b32 {sW}, v2",
      "s_mov_b32 s72, KEND-PCREF-4")
    for i in range(2):
        E(f"v_add_u32 v4, {i*32768}, v3", "v_min_u32 v4, s72, v4", "v_mov_b32 v5, s71",
          "v_add_co_u32 v4, vcc, s70, v4", "v_addc_co_u32 v5, vcc, 0, v5, vcc",
          f"global_load_dword v{254+i}, v[4:5], off")
    E("v_and_b32 v1, 63, v0", "v_lshlrev_b32 v1, 4, v1")
    if o["debug"]:
        E("v_mov_b32 v0, 0", f"s_mov_b32 {sST}, 2", "s_memrealtime s[92:93]", "s_waitcnt lgkmcnt(0)", "v_writelane_b32 v0, s92, 0")
        stamp()
    E(f"s_and_b32 {sG}, s2, 7", f"s_lshr_b32 {sC}, s2, 3", f"s_lshr_b32 {sRB}, s2, 5", f"s_and_b32 {sCQ}, {sC}, 3")
    x_dma_setup()
    E(f"s_mul_i32 {T[2]}, {sW}, 28672")
    E(f"s_lshl_b32 {T[3]}, {sW}, 12")
    E("v_lshrrev_b32 v32, 6, v1", "v_lshlrev_b32 v32, 10, v32", "v_and_or_b32 v32, v1, 48, v32")
    E("s_waitcnt lgkmcnt(0)")
    E(f"s_load_dword {sF}, s[56:57], 0")
    srd(8, 32, 0x200000)
    x_dma(XIN, "")
    E(f"s_bitcmp1_b32 {sCQ}, 0", "s_cselect_b32 s20, s38, s36", "s_cselect_b32 s21, s39, s37",
      "s_mov_b32 s22, 16384", "s_mov_b32 s23, 0x20000", f"s_mov_b32 m0, {T[2]}")
    srd(16, 34, 0x80000)
    for i in range(4):
        E(f"buffer_load_dwordx4 {vL}, {SB}, {T[3]} offen offset:{i*1024} lds ;@wkv")
    E("v_lshrrev_b32 v35, 9, v1", "v_lshlrev_b32 v33, 9, v35",
      "v_bfe_u32 v35, v1, 6, 2", "v_lshl_add_u32 v33, v35, 6, v33",
      "v_bfe_u32 v35, v1, 8, 1", "v_lshl_add_u32 v33, v35, 5, v33",
      "v_bfe_u32 v35, v1, 4, 1", "v_lshl_add_u32 v33, v35, 4, v33",
      "v_bfe_u32 v35, v1, 5, 1", "v_lshl_add_u32 v33, v35, 3, v33",
      f"v_add_u32 v33, {T[2]}, v33",
      "v_and_b32 v34, 0x300, v1", "v_bfe_u32 v35, v1, 4, 4", "v_lshl_add_u32 v34, v35, 3, v34",
      f"v_add_u32 v34, {T[2]}, v34")
    E("s_cmp_lt_u32 s2, 112", "s_cbranch_scc1 PJ1")
    E("s_cmp_lt_u32 s2, 224", "s_cselect_b32 s24, s48, s40", "s_cselect_b32 s25, s49, s41",
      "s_cselect_b32 s26, 0x1c0000, s18", f"s_cselect_b32 {T[7]}, 0x70, 32", f"s_cselect_b32 {T[8]}, 0, 0x70",
      f"s_cselect_b32 {sPD}, {W2F - WOF}, 0", f"s_add_u32 {sPD}, {sPD}, {WOF}",
      f"s_sub_u32 {T[8]}, s2, {T[8]}", f"s_sub_u32 {T[8]}, {T[8]}, 0x70",
      f"s_and_b32 {T[9]}, {T[8]}, 7", f"s_lshl_b32 {T[9]}, {T[9]}, 1", f"s_and_b32 {T[4]}, {sW}, 1",
      f"s_add_u32 {T[9]}, {T[9]}, {T[4]}",
      f"s_lshr_b32 {T[8]}, {T[8]}, 3", f"s_lshl_b32 {T[8]}, {T[8]}, 1", f"s_lshr_b32 {T[4]}, {sW}, 1",
      f"s_add_u32 {T[8]}, {T[8]}, {T[4]}",
      f"s_lshl_b32 {T[4]}, {T[8]}, 16", f"s_lshl_b32 {T[5]}, {T[9]}, 6", f"s_add_u32 {T[4]}, {T[4]}, {T[5]}",
      f"s_mul_i32 {T[9]}, {T[9]}, {T[7]}", f"s_lshl2_add_u32 {T[9]}, {T[8]}, {T[9]}", f"s_lshl_b32 {T[9]}, {T[9]}, 10",
      f"s_add_u32 {sPD}, {sPD}, {T[9]}", f"s_mov_b32 {T[5]}, 16384", f"s_mov_b32 {T[6]}, 0x20000000",
      "v_mov_b32 v36, v32", "v_mov_b32 v28, v33", "v_add_u32 v29, 256, v33", "s_branch PJD")
    E("PJ1:", "s_mov_b32 s24, s44", "s_mov_b32 s25, s45", "s_mov_b32 s26, 0x1c0000",
      f"s_and_b32 {T[8]}, s2, 3", f"s_and_b32 {T[9]}, s2, 0xfc", f"s_add_u32 {T[9]}, {T[9]}, {sW}",
      f"s_mul_i32 {T[4]}, {T[8]}, {128*3584}", f"s_lshl_b32 {T[5]}, {T[9]}, 5", f"s_add_u32 {T[4]}, {T[4]}, {T[5]}",
      f"s_mul_i32 {T[6]}, {T[8]}, 7168", f"s_lshl1_add_u32 {T[6]}, {T[5]}, {T[6]}", f"s_add_u32 {T[6]}, {T[6]}, {CS1}",
      f"s_lshl2_add_u32 {T[9]}, {T[9]}, {T[8]}", f"s_lshl_b32 {T[9]}, {T[9]}, 12", f"s_add_u32 {sPD}, {T[9]}, {W1F}",
      f"s_mov_b32 {T[5]}, {32*3584}",
      "v_lshrrev_b32 v36, 5, v1", "v_mul_u32_u24 v36, 3584, v36", "v_and_or_b32 v36, v1, 16, v36",
      "v_mov_b32 v28, v34", "v_add_u32 v29, 128, v34")
    E("PJD:", "s_mov_b32 s27, 0x20000")
    for i in range(4):
        E(f"s_add_u32 m0, {T[2]}, {(4+i)*1024}", "s_nop 0",
          f"buffer_load_dwordx4 v36, {SC}, {T[4]} offen lds ;@prep", f"s_add_u32 {T[4]}, {T[4]}, {T[5]}")
    E(f"s_lshl2_add_u32 {T[3]}, {sCQ}, {sW}", f"s_lshl_b32 {T[3]}, {T[3]}, 6")
    def wq_slot(ks):
        return 8 + ks if ks < 20 else (ks - 20 if ks < 28 else ks - 20)
    def wq_dma(ks):
        E(f"s_add_u32 m0, {T[2]}, {wq_slot(ks)*1024}", "s_nop 0",
          f"buffer_load_dwordx4 v30, {SA}, {T[3]} offen lds ;@wq{ks}", f"s_add_u32 {T[3]}, {T[3]}, 16384")
    E("v_mov_b32 v30, v32", "v_mov_b32 v31, v33")
    for ks in range(20):
        wq_dma(ks)
    srd(4, 56, 0x10000000)
    E(f"s_add_u32 s12, s56, {X2}", "s_addc_u32 s13, s57, 0", "s_mov_b32 s14, 0x200000", "s_mov_b32 s15, 0x20000")
    srd(20, 50, 1024)
    srd(24, 46, 3584)
    E(f"s_and_b32 {T[4]}, {sC}, 7", f"s_lshl2_add_u32 {T[4]}, {T[4]}, {sW}", f"s_lshl_b32 {T[4]}, {T[4]}, 5",
      "v_lshrrev_b32 v35, 9, v1", "v_lshlrev_b32 v35, 4, v35",
      f"buffer_load_dwordx4 {ar(AB2,4)}, v35, {SB}, {T[4]} offen ;@b2")
    E(f"s_getreg_b32 {sXCC}, hwreg(HW_REG_XCC_ID, 0, 4)", f"s_mov_b32 {sONE}, 0x3f803f80", f"s_mov_b32 {sBUD}, 0x40000",
      f"s_mov_b32 {sLAY}, 0", f"s_mov_b32 {sSAFE}, 0", f"s_mov_b32 {sHI}, 0xffff0000",
      f"s_lshl_b32 {sGR}, {sG}, 21", f"s_add_u32 {sGR}, {sGR}, {GRP0}",
      f"s_lshl_b32 {sFL}, {sG}, 11", f"s_add_u32 {sFL}, {sFL}, {GFL0}",
      f"s_mov_b32 {sKV}, {KV0}", f"s_mov_b32 {sKVF}, {KVF0}",
      f"s_mul_i32 {sM0K}, {sW}, {2*TS}", f"s_add_u32 {sM0K}, {sM0K}, {RING}",
      f"s_mov_b32 s88, {f2u(-0.7978845608028654*2*1.4426950408889634*0.044715)}",
      f"s_mov_b32 s89, {f2u(-0.7978845608028654*2*1.4426950408889634)}",
      f"s_cmp_eq_u32 {sW}, 0", "s_cselect_b32 s94, 1, 0", "s_mov_b32 s95, 0")
    E(f"v_mov_b32 {vIDX}, 0xdddddddd", f"v_add_u32 {vK}, {RING}, v1",
      "v_lshrrev_b32 v35, 9, v1", "v_and_b32 v4, 0xf0, v1", "v_lshl_add_u32 v4, v35, 8, v4",
      f"v_add_u32 v4, {RING+1024}, v4", "v_add_u32 v5, 512, v4", "v_and_b32 v35, 0x100, v1", "v_cmp_ne_u32 vcc, 0, v35",
      f"v_mov_b32 v35, {RING+2048}", "v_cndmask_b32 v4, v4, v35, vcc", "v_cndmask_b32 v5, v5, v35, vcc")
    E("s_waitcnt lgkmcnt(0)", f"s_add_u32 {sF}, {sF}, 0x9e3779b9", f"v_mov_b32 {vF}, {sF}")

    def p1_addr():
        E(f"s_mul_i32 {T[7]}, {sW}, 8320", f"s_add_u32 {T[7]}, {T[7]}, {XT}",
          "v_lshrrev_b32 v96, 7, v1", "v_mul_u32_u24 v112, 1040, v96", "v_and_b32 v97, 0x70, v1",
          f"v_add3_u32 v112, v112, v97, {T[7]}",
          f"s_lshl_b32 {T[7]}, {sW}, 5", f"s_add_u32 {T[7]}, {T[7]}, {L_MU}", f"v_lshl_add_u32 v114, v96, 2, {T[7]}",
          f"s_lshr_b32 {T[8]}, {sCQ}, 1",
          f"s_mul_i32 {T[7]}, {T[8]}, {16*1040}", f"s_lshl_b32 {T[9]}, {sW}, 8", f"s_add_u32 {T[7]}, {T[7]}, {T[9]}",
          f"s_add_u32 {T[7]}, {T[7]}, {XT}",
          "v_bfe_u32 v96, v1, 4, 4", "v_lshrrev_b32 v97, 8, v1",
          "v_mul_u32_u24 v113, 1040, v96", "v_lshl_add_u32 v113, v97, 4, v113", f"v_add_u32 v113, {T[7]}, v113",
          f"s_lshl_b32 {T[7]}, {sW}, 10", f"s_add_u32 {T[7]}, {T[7]}, {L_KVP}", f"v_add_u32 v115, {T[7]}, v1",
          f"s_bitcmp1_b32 {sCQ}, 0", "s_cselect_b64 vcc, -1, 0", f"s_cselect_b32 {T[9]}, 4, 0",
          f"s_lshl_b32 {T[7]}, {T[8]}, 6", f"s_add_u32 {T[7]}, {T[7]}, {L_MU}",
          "v_lshlrev_b32 v98, 2, v97", "v_cndmask_b32 v98, v96, v98, vcc", f"v_lshl_add_u32 v116, v98, 2, {T[7]}",
          f"v_add_u32 v117, {T[9]}, v116", f"v_add_u32 v118, {T[9]}, v117", f"v_add_u32 v119, {T[9]}, v118",
          "v_lshrrev_b32 v100, 1, v97", "v_and_b32 v101, 1, v97", "v_lshlrev_b32 v101, 3, v101",
          "v_lshl_add_u32 v98, v100, 9, v101", "v_lshl_add_u32 v98, v96, 4, v98",
          f"s_lshl_b32 {T[7]}, {T[8]}, 8", f"v_add_u32 v98, {T[7]}, v98",
          "v_lshl_add_u32 v99, v100, 8, v101", "v_and_b32 v100, 0x30, v1", "v_add_u32 v99, v99, v100",
          "v_bfe_u32 v100, v1, 6, 1", "v_lshl_add_u32 v99, v100, 7, v99",
          "v_bfe_u32 v100, v1, 7, 1", "v_lshl_add_u32 v99, v100, 6, v99",
          f"s_lshl_b32 {T[7]}, {T[8]}, 9", f"s_add_u32 {T[7]}, {T[7]}, 1024", f"v_add_u32 v99, {T[7]}, v99",
          "v_cndmask_b32 v121, v98, v99, vcc",
          "v_bfe_u32 v96, v1, 4, 5", "v_lshrrev_b32 v97, 9, v1",
          f"v_mul_u32_u24 {vXB}, 1040, v96", f"v_lshl_add_u32 {vXB}, v97, 4, {vXB}", f"v_add_u32 {vXB}, {XT}, {vXB}",
          f"s_lshl2_add_u32 {T[7]}, {sCQ}, {sW}", f"s_lshl_b32 {T[7]}, {T[7]}, 6", f"v_add_u32 v122, {T[7]}, {vXB}",
          "v_lshlrev_b32 v96, 2, v96", f"v_add_u32 v123, {L_MU}, v96",
          f"s_lshl_b32 {T[7]}, {sW}, 7", f"s_add_u32 {T[7]}, {T[7]}, {L_CSQ}",
          f"v_add_u32 v124, {T[7]}, v96", f"v_lshl_add_u32 v125, v97, 4, {T[7]}",
          f"s_lshl_b32 {T[8]}, {sG}, 3", f"s_add_u32 {T[8]}, {T[8]}, {sRB}", f"s_lshl_b32 {T[8]}, {T[8]}, 11",
          f"s_add_u32 {T[8]}, {T[8]}, {sKV}",
          f"s_lshl_b32 {T[9]}, {sG}, 5", f"s_add_u32 {T[9]}, {T[9]}, {sC}", f"s_lshl2_add_u32 {T[9]}, {T[9]}, {sKVF}")
        E([f"v_mov_b32 v{84+i}, 0" for i in range(4)])

    def p1(first):
        if first:
            E("v_mov_b32 v126, v34")
            E([f"v_mov_b32 v{108+i}, {sONE}" for i in range(4)])
        E("WAIT vm=x")
        stamp()
        E([f"ds_read_b128 {vr(32+4*i,4)}, v112 offset:{i*128} ;@st{i}" for i in range(8)])
        if first:
            E("WAIT vm=wkv")
            for ks in range(4):
                E(f"ds_read_b64_tr_b16 {ar(AKV+4*ks,2)}, v126 offset:{ks*1024}",
                  f"ds_read_b64_tr_b16 {ar(AKV+4*ks+2,2)}, v126 offset:{ks*1024+128}")
        E("s_barrier")
        E([f"ds_read_b128 {vr(64+4*i,4)}, v113 offset:{i*64} ;@kx" for i in range(4)])
        def dots(i):
            L = []
            for r in range(4):
                x = 32 + 4*i + r
                L += [f"v_dot2c_f32_bf16 v{84+(r&1)}, {sONE}, v{x}", f"v_dot2c_f32_bf16 v{86+(r&1)}, v{x}, v{x}"]
            return L
        for i in range(4):
            E(f"WAIT lg=st{i}", dots(i))
        E(f"s_bitcmp1_b32 {sCQ}, 0", "WAIT lg=0")
        lv = P.lab("KVV"); ld = P.lab("KVD")
        E(f"s_cbranch_scc1 {lv}")
        def kvm(isv_):
            L = []
            for ks in range(4):
                w = ar(AKV+4*ks, 4); x = vr(64+4*ks, 4); on = vr(108, 4)
                a, b = (x, w) if isv_ else (w, x)
                L.append(f"v_mfma_f32_16x16x32_bf16 v[80:83], {a}, {b}, {'0' if ks == 0 else 'v[80:83]'}")
                if first:
                    a, b = (on, w) if isv_ else (w, on)
                    L.append(f"v_mfma_f32_16x16x32_bf16 {vr(CK,4)}, {a}, {b}, {'0' if ks == 0 else vr(CK,4)}")
            return L
        E(kvm(False), f"{ld}:")
        P.out_of_line(f"{lv}:", kvm(True), f"s_branch {ld}")
        for i in range(4, 8):
            E(dots(i))
        E("ds_write_b128 v115, v[80:83]")
        if first:
            E(f"ds_write_b128 v115, {vr(CK,4)} offset:{L_CKP-L_KVP}")
        E("v_add_f32 v84, v84, v85", "v_add_f32 v86, v86, v87")
        for d in ("quad_perm:[1,0,3,2]", "quad_perm:[2,3,0,1]", "row_half_mirror"):
            E(f"v_add_f32_dpp v84, v84, v84 {d} row_mask:0xf bank_mask:0xf",
              f"v_add_f32_dpp v86, v86, v86 {d} row_mask:0xf bank_mask:0xf")
        E(f"v_mul_f32 v84, {f2u(1/512)}, v84", f"v_mul_f32 v86, {f2u(1/512)}, v86",
          "v_fma_f32 v86, -v84, v84, v86", "v_max_f32 v86, 0, v86", f"v_add_f32 v86, {f2u(1e-5)}, v86",
          "v_rsq_f32 v86, v86", "s_nop 0", "ds_write2_b32 v114, v84, v86 offset1:32",
          f"s_cmp_lg_u32 {sW}, 0", "WAIT lg=0", "s_barrier")
        lk = P.lab("KVSKIP")
        E(f"s_cbranch_scc1 {lk}")
        E([f"ds_read_b128 {vr(64+4*i,4)}, v115 offset:{1024*(i+1)} ;@opt" for i in range(3)])
        if first:
            E([f"ds_read_b128 {vr(96+4*i,4)}, v115 offset:{L_CKP-L_KVP+1024*(i+1)} ;@opt" for i in range(3)])
        E([f"ds_read2_b32 {vr(88+2*i,2)}, v{116+i} offset1:32 ;@opt" for i in range(4)])
        E("WAIT lg=4")
        for i in range(3):
            E(f"v_pk_add_f32 v[80:81], v[80:81], {vr(64+4*i,2)}", f"v_pk_add_f32 v[82:83], v[82:83], {vr(66+4*i,2)}")
        if first:
            for i in range(3):
                E(f"v_pk_add_f32 {vr(CK,2)}, {vr(CK,2)}, {vr(96+4*i,2)}", f"v_pk_add_f32 {vr(CK+2,2)}, {vr(CK+2,2)}, {vr(98+4*i,2)}")
        E("WAIT lg=0")
        E([f"v_fma_f32 v{80+i}, -v{88+2*i}, v{CK+i}, v{80+i}" for i in range(4)])
        E([f"v_mul_f32 v{80+i}, v{80+i}, v{89+2*i}" for i in range(4)])
        E("v_cvt_pk_bf16_f32 v80, v80, v81", "v_cvt_pk_bf16_f32 v81, v82, v83",
          f"buffer_store_dwordx2 v[80:81], v121, {WS}, {T[8]} offen sc1 ;@opt kvst")
        E(f"{lk}:")
        stamp()
        def trq(ks):
            return [f"ds_read_b64_tr_b16 {vr(R+4*ks,2)}, v31 offset:{wq_slot(ks)*1024}",
                    f"ds_read_b64_tr_b16 {vr(R+4*ks+2,2)}, v31 offset:{wq_slot(ks)*1024+256}"]
        if first:
            for ks in range(20, 24):
                wq_dma(ks)
            E("WAIT vm=prep")
            for i in range(4):
                E(f"ds_read_b64_tr_b16 {vr(64+4*i,2)}, v28 offset:{(4+i)*1024}",
                  f"ds_read_b64_tr_b16 {vr(66+4*i,2)}, v29 offset:{(4+i)*1024}")
            E("WAIT vm=wq3")
            for ks in range(4):
                E(trq(ks))
            E("WAIT lg=0")
            for ks in range(24, 32):
                wq_dma(ks)
            for i in range(4):
                E(f"v_mfma_f32_16x16x32_bf16 v[96:99], {vr(64+4*i,4)}, v[108:111], {'0' if i == 0 else 'v[96:99]'}",
                  f"buffer_store_dwordx4 {vr(64+4*i,4)}, {vL}, {WS}, {sPD} offen offset:{i*1024} sc1")
            E("v_lshrrev_b32 v100, 8, v1", "v_lshlrev_b32 v100, 4, v100",
              f"buffer_store_dwordx4 v[96:99], v100, {WS}, {T[6]} offen sc1")
        E("v_mov_b32 v84, 0", "v_mov_b32 v85, 0")
        D = 4 if first else 6
        def rd(ks):
            L = []
            if first and ks >= 4:
                if ks % 4 == 0:
                    L.append(f"WAIT vm=wq{ks+3}")
                L += trq(ks)
            L.append(f"ds_read_b128 {vr(48+4*(ks%8),4)}, {vXB} offset:{ks*32} ;@qb{ks}")
            return L
        def kvflag():
            E(f"s_add_u32 {T[7]}, {sF}, {sXCC}", f"v_mov_b32 v86, {T[7]}", f"s_mov_b64 exec, {sW0}", "WAIT vm=kvst",
              f"buffer_store_dword v86, off, {WS}, {T[9]} sc1 ;@opt", "s_mov_b64 exec, -1")
        for ks in range(D):
            E(rd(ks))
        for ks in range(32):
            E(f"WAIT lg=qb{ks}")
            E(f"v_mfma_f32_32x32x16_bf16 v[32:47], {vr(R+4*ks,4)}, {vr(48+4*(ks%8),4)}, {'0' if ks == 0 else 'v[32:47]'}")
            if first and ks + D == 20:
                kvflag()
            if ks + D < 32:
                E(rd(ks + D))
            elif ks + D == 32:
                E(f"ds_read_b128 {vr(RES,4)}, v122", f"ds_read_b128 {vr(RES+4,4)}, v122 offset:32",
                  "ds_read2_b32 v[88:89], v123 offset1:32")
            E([f"v_dot2c_f32_bf16 v{84+(r&1)}, {sONE}, v{R+4*ks+r}" for r in range(4)])
        E("v_add_f32 v84, v84, v85", "v_mov_b32 v85, v84", "v_permlane32_swap_b32 v84, v85", "v_add_f32 v84, v84, v85",
          "ds_write_b32 v124, v84")
        E([f"ds_read_b128 {vr(96+4*a,4)}, v125 offset:{a*32}" for a in range(4)])
        if first:
            E(f"s_lshl_b32 {T[4]}, {sG}, 3", f"s_add_u32 {T[4]}, {T[4]}, {sRB}",
              f"s_lshl2_add_u32 {T[5]}, {sCQ}, {sW}", f"s_lshl_b32 {T[5]}, {T[5]}, 5", f"s_add_u32 {T[5]}, {T[5]}, {T[4]}",
              f"s_lshl_b32 {T[5]}, {T[5]}, 10", f"s_add_u32 {T[5]}, {T[5]}, {WQF}",
              f"s_cmp_lt_u32 {T[4]}, 32", f"s_cselect_b32 {T[5]}, {T[5]}, 0x20000000",
              f"s_and_b32 {T[4]}, {T[4]}, 31", f"s_lshl_b32 {T[4]}, {T[4]}, 2",
              f"s_set_gpr_idx_on {T[4]}, gpr_idx(SRC0)")
            E([f"v_mov_b32 v{64+i}, v{R+i}" for i in range(4)])
            E("s_set_gpr_idx_off", f"buffer_store_dwordx4 v[64:67], {vL}, {WS}, {T[5]} offen sc1")
        else:
            kvflag()
        E("WAIT lg=0", f"v_mul_f32 v89, {f2u(0.25*1.4426950408889634)}, v89")
        for i in range(8):
            E(f"v_pk_fma_f32 {vr(32+2*i,2)}, {vr(96+2*i,2)}, v[88:89], {vr(32+2*i,2)} op_sel_hi:[1,0,1] neg_lo:[0,1,0] neg_hi:[0,1,0]")
        for i in range(8):
            E(f"v_pk_mul_f32 {vr(32+2*i,2)}, {vr(32+2*i,2)}, v[88:89] op_sel:[0,1]")
        for i in range(8):
            E(f"v_cvt_pk_bf16_f32 v{Q+i}, v{32+2*i}, v{33+2*i}")

    p1_addr()
    p1(True)

    S = [32, 48]; O = [64, 80]; KF = [96, 100]; VL = [104, 108]; VH = [112, 116]
    E("LAYER:")
    stamp()
    E("s_barrier")
    E("v_bfe_u32 v96, v1, 4, 4", f"v_mul_u32_u24 v96, {TS}, v96", f"v_add_u32 v96, {RING+2048}, v96")
    E([f"v_mov_b32 v{100+i}, {sONE}" for i in range(4)])
    E("ds_write_b128 v96, v[100:103]")
    E([f"v_mov_b32 v{64+i}, 0" for i in range(32)])
    E(f"s_lshl_b32 {T[0]}, {sW}, 12", f"s_add_u32 {T[0]}, {T[0]}, {sKV}", f"v_add_u32 v126, {T[0]}, v1",
      f"s_lshl_b32 {sCH}, {sG}, 14",
      f"s_and_b32 {T[0]}, {sW}, 1", f"s_lshl_b32 {T[0]}, {T[0]}, 8", f"v_xor_b32 v124, {T[0]}, v1",
      f"s_and_b32 {T[1]}, {sC}, 15", f"s_mul_i32 {sM0W}, {sW}, 28672", f"s_mul_i32 {sA1}, {T[1]}, 114688",
      f"s_add_u32 {sA1}, {sA1}, {sM0W}", f"s_add_u32 {sA1}, {sA1}, {W1F}",
      f"s_mul_i32 {T[1]}, {T[1]}, 112", f"s_lshl_b32 {T[0]}, {sW}, 5", f"s_add_u32 {T[1]}, {T[1]}, {T[0]}",
      "v_bfe_u32 v125, v1, 4, 5", f"v_add_u32 v125, {T[1]}, v125", "v_lshlrev_b32 v127, 2, v125", "v_lshlrev_b32 v125, 1, v125",
      f"s_and_b32 {T[0]}, {sC}, 7", f"s_lshl_b32 {T[0]}, {T[0]}, 1", f"s_lshr_b32 {T[1]}, {sW}, 1", f"s_add_u32 {T[0]}, {T[0]}, {T[1]}",
      f"s_xor_b32 {T[1]}, {T[0]}, 1", f"s_mul_i32 {sA2a}, {T[0]}, 114688", f"s_mul_i32 {sA2b}, {T[1]}, 114688",
      f"s_add_u32 {T[0]}, {sM0W}, {W2F}", f"s_add_u32 {sA2a}, {sA2a}, {T[0]}", f"s_add_u32 {sA2b}, {sA2b}, {T[0]}",
      f"s_lshl2_add_u32 {sAO}, {sCQ}, {sW}", f"s_lshl_b32 {sAO}, {sAO}, 15", f"s_add_u32 {sAO}, {sAO}, {WOF}",
      f"s_lshl_b32 {T[0]}, {sG}, 7", f"s_add_u32 {T[0]}, {T[0]}, {sKVF}", "v_bfe_u32 v121, v1, 2, 7",
      f"s_lshl_b32 {T[2]}, s2, 2", f"s_add_u32 {T[2]}, {T[2]}, {PREPF}", f"s_mov_b32 {T[3]}, {PREPF}")
    poll("v121", T[0], rng=True, inv=False)
    def kv_dma(slot):
        L = []
        for k in range(4):
            pre = []
            if k % 2 == 0:
                pre = [f"s_add_u32 m0, {sM0K}, {slot*SLOT + (k>>1)*16}"]
            L.append((pre, f"buffer_load_dwordx4 v126, {WS}, {sCH} offen offset:{k*1024} sc1 lds ;@kv"))
        return L
    adv = [f"s_add_u32 {sCH}, {sCH}, 0x4000", f"s_and_b32 {sCH}, {sCH}, 0x1ffff"]
    for pre, x in kv_dma(0):
        E(pre, x)
    E(adv)
    E(f"v_cmp_ne_u32 vcc, {sXCC}, v120", "s_cmp_lg_u64 vcc, 0", f"s_cselect_b32 {sSAFE}, 1, {o['force_safe']}")
    stamp()
    E("WAIT vm=0 lg=0", "s_barrier")
    E(f"ds_read_b128 {vr(KF[0],4)}, {vK}", f"ds_read_b128 {vr(VL[0],4)}, {vVlo}", f"ds_read_b128 {vr(VH[0],4)}, {vVhi}")
    E(f"s_mov_b64 exec, {sW0}", f"buffer_store_dword {vF}, off, {WS}, {T[2]} sc1 ;@opt", "s_mov_b64 exec, -1")
    E("WAIT lg=0")
    stamp()
    def QK(t):
        return f"v_mfma_f32_32x32x16_bf16 {vr(S[t&1],16)}, {vr(KF[(t>>1)&1],4)}, {vr(Q+4*(t&1),4)}, 0"
    def PV(t, hi):
        v = (VH if hi else VL)[(t>>1)&1]
        return f"v_smfmac_f32_32x32x32_bf16 {vr(O[t&1],16)}, {vr(v,4)}, {vr(S[t&1]+8*hi,8)}, {vIDX}"
    W = []
    for i in range(28):
        pre = []
        if i % 4 == 0 and i:
            pre += [f"s_add_u32 {sA1}, {sA1}, 4096", f"s_add_u32 {sM0W}, {sM0W}, 4096"]
        W.append((pre, f"buffer_load_dwordx4 {vL}, {WS}, {sA1} offen offset:{(i&3)*1024} sc1 lds", "m0w"))
    for i in range(32):
        pre = [f"s_add_u32 {sAO}, {sAO}, 4096"] if (i % 4 == 0 and i) else []
        W.append((pre, f"buffer_load_dwordx4 {vr(R+4*i,4)}, {vL}, {WS}, {sAO} offen offset:{(i&3)*1024} sc1", None))
    for i in range(4):
        W.append(([f"s_mov_b32 {T[4]}, {CS1+i*7168}"], f"buffer_load_dword v{28+i}, v127, {WS}, {T[4]} offen sc1", None))
    W.append(([], f"buffer_load_ushort v127, v125, {SC}, 0 offen", None))
    for ct in range(2):
        s = sA2b if ct else sA2a
        for i in range(28):
            pre = [f"s_add_u32 {s}, {s}, 4096"] if (i % 4 == 0 and i) else []
            W.append((pre, f"buffer_load_dwordx4 {ar((i*2+ct)*4,4)}, v124, {WS}, {s} offen offset:{(i&3)*1024} sc1", None))
    if o.get("warm"):
        W.append(([f"s_lshl2_add_u32 {T[5]}, {sC}, {sW}", f"s_lshl_b32 {T[4]}, {T[5]}, 13", f"s_add_u32 {T[4]}, {T[4]}, {sGR}",
                   "v_lshlrev_b32 v123, 3, v1"], f"buffer_load_dword v120, v123, {WS}, {T[4]} offen sc1", None))
        W.append(([f"s_add_u32 {T[4]}, {T[4]}, 0x100000"], f"buffer_load_dword v120, v123, {WS}, {T[4]} offen sc1", None))
        W.append(([f"s_lshl_b32 {T[4]}, {sG}, 7", f"s_add_u32 {T[4]}, {T[4]}, {T[5]}", f"s_lshl_b32 {T[4]}, {T[4]}, 11",
                   "v_and_b32 v123, 0x7ff, v123"], f"buffer_load_dword v120, v123, {OUT}, {T[4]} offen sc1", None))
    pos = {(t, p): [] for t in range(128) for p in range(3)}
    def prevpos(t, p):
        return (t, p-1) if p else (t-1, 2)
    used = set()
    m0state = [None]
    def place(t, p, pre, ins, m0=None):
        pre = list(pre)
        if m0 == "m0w" and (m0state[0] != "w" or pre):
            pre.append(f"s_mov_b32 m0, {sM0W}"); m0state[0] = "w"
        pos[prevpos(t, p)] += pre
        pos[(t, p)].append(ins)
        used.add((t, p))
    def check(regs4, limit, soff):
        rt = P.lab("RETRY"); bk = P.lab("BACK"); fl = P.lab("RFAIL")
        b = regs4
        chk = [f"v_sad_u32 v{b}, v{b}, {vF}, 0"] + [f"v_sad_u32 v{b}, v{b+i}, {vF}, v{b}" for i in (1, 2, 3)] + \
              [f"v_cmp_lt_u32 vcc, {limit}, v{b}"]
        P.out_of_line(f"{rt}:", f"buffer_load_dwordx4 {vr(b,4)}, {vL}, {WS}, {soff} offen sc1",
                      f"s_sub_u32 {sBUD}, {sBUD}, 1", f"s_cbranch_scc1 {fl}", "s_waitcnt vmcnt(0)", chk,
                      f"s_cbranch_vccnz {rt}", f"s_branch {bk}",
                      f"{fl}:", f"s_mov_b32 {sBUD}, 0", "s_waitcnt vmcnt(0)", f"s_branch {bk}")
        return chk + [f"s_cbranch_vccnz {rt}", f"{bk}:"]
    for j in range(63):
        ch = (j + 1) >> 3; tl = (j + 1) & 7; off = (ch & 1)*SLOT + tl*TS; b = (j + 1) & 1
        pos[(2*j, 0)].append(f"ds_read_b128 {vr(KF[b],4)}, {vK} offset:{off} ;@kf")
        pos[(2*j, 1)].append(f"ds_read_b128 {vr(VL[b],4)}, {vVlo} offset:{off}")
        pos[(2*j, 2)].append(f"ds_read_b128 {vr(VH[b],4)}, {vVhi} offset:{off}")
        pos[(2*j+1, 0)].append("WAIT lg=kf")
        if j % 8 == 6 and j < 62:
            pos[(2*j+1, 2)] += ["WAIT vm=kv lg=0", "s_barrier"]
        else:
            pos[(2*j+1, 2)].append("WAIT lg=0")
    sched = {}
    sl, sc_ = o["s2_load"], o["s2_chk"]
    sched[(sl, 0)] = ([], f"buffer_load_dwordx4 v[120:123], {vL}, {WS}, {sKVF} offen sc1 ;@f2", None)
    pos[(sc_-1, 2)] += ["WAIT vm=f2"] + check(120, 63, sKVF)
    kd = kv_dma(1)
    for k, q in enumerate([(sc_, 0), (sc_, 1), (sc_, 2), (sc_+2, 0)]):
        sched[q] = (kd[k][0], kd[k][1], "kv")
    pos[(sc_+2, 1)] += adv
    sched[(o["pf_load"], 0)] = ([], f"buffer_load_dwordx4 v[120:123], {vL}, {WS}, {T[3]} offen sc1 ;@f3", None)
    pos[(o["pf_chk"]+1, 2)] += ["WAIT vm=f3"] + check(120, 0, T[3])
    for i in range(6):
        kd = kv_dma(i & 1)
        for k, q in enumerate([(16*i+13, 2), (16*i+15, 0), (16*i+15, 1), (16*i+15, 2)]):
            sched[q] = (kd[k][0], kd[k][1], "kv")
        pos[(16*i+16, 0)] += adv
    wi = 0
    for t in range(1, 128, 2):
        for p in range(3):
            if (t, p) in sched:
                pre, ins, k = sched[(t, p)]
                place(t, p, pre, ins)
                if k == "kv":
                    m0state[0] = "kv"
            elif t > o["pf_chk"] + 2 and wi < len(W):
                place(t, p, *W[wi]); wi += 1
    assert wi == len(W), wi
    E(QK(0))
    for t in range(128):
        e = [f"v_exp_f32 v{S[t&1]+i}, v{S[t&1]+i}" for i in range(16)]
        E(e[0:2])
        if t:
            E(PV(t-1, 1))
        E(pos[(t, 0)], e[2:5])
        if t < 127:
            E(QK(t+1))
        E(pos[(t, 1)], e[5:11], PV(t, 0), pos[(t, 2)], e[11:16])
    E(f"s_lshl2_add_u32 {T[1]}, {sCQ}, {sW}", f"s_lshl_b32 {T[0]}, {sRB}, 4", PV(127, 1))
    LO = f2u(2.0**-60); HI = f2u(2.0**60)
    E(f"s_add_u32 {T[1]}, {T[1]}, {T[0]}",
      f"s_lshl_b32 {T[0]}, {T[1]}, 11", f"s_add_u32 {T[0]}, {T[0]}, {sGR}",
      f"s_lshl_b32 {T[6]}, {T[1]}, 8", f"s_add_u32 {T[6]}, {T[6]}, {sGR}", f"s_add_u32 {T[6]}, {T[6]}, {G_ST}",
      f"s_lshl2_add_u32 {T[1]}, {T[1]}, {sFL}",
      f"v_subrev_u32 v122, {LO}, v{O[0]+8}", f"s_mov_b32 {T[4]}, {HI-LO}",
      f"v_subrev_u32 v121, {LO}, v{O[1]+8}", "v_max_u32 v122, v122, v121", f"v_cmp_lt_u32 vcc, {T[4]}, v122")
    if o["force_slow"]:
        E("s_branch SLOW")
    E("s_cbranch_vccnz SLOW", "SLOWD:")
    stamp()
    for h in range(2):
        E(f"v_rcp_f32 v{O[h]+8}, v{O[h]+8}")
    for h in range(2):
        E([f"v_pk_mul_f32 {vr(O[h]+2*i,2)}, {vr(O[h]+2*i,2)}, {vr(O[h]+8,2)} op_sel_hi:[1,0]" for i in range(4)])
        E([f"v_cvt_pk_bf16_f32 v{O[h]+i}, v{O[h]+2*i}, v{O[h]+2*i+1}" for i in range(4)])
        E(f"buffer_store_dwordx4 {vr(O[h],4)}, {vL}, {WS}, {T[0]} offen offset:{h*1024} ;@ost")
    sl_ = ["SLOW:", "v_mov_b32 v121, 0xff800000", "v_mov_b32 v122, 0xff800000", f"s_mov_b32 {T[4]}, {sKV}", f"s_mov_b32 {T[5]}, 64",
           "SLOW1:", f"buffer_load_dwordx4 {vr(KF[0],4)}, {vL}, {WS}, {T[4]} offen sc1", "s_waitcnt vmcnt(0)", QK(0), QK(1)]
    for h in range(2):
        sl_ += [f"v_max3_f32 v{121+h}, v{S[h]+2*i}, v{S[h]+2*i+1}, v{121+h}" for i in range(8)]
    sl_ += [f"s_add_u32 {T[4]}, {T[4]}, 2048", f"s_sub_u32 {T[5]}, {T[5]}, 1", f"s_cmp_lg_u32 {T[5]}, 0", "s_cbranch_scc1 SLOW1"]
    for h in range(2):
        sl_ += [f"v_mov_b32 v123, v{121+h}", f"v_permlane32_swap_b32 v{121+h}, v123", f"v_max_f32 v{121+h}, v{121+h}, v123"]
    sl_ += [f"v_mov_b32 v{64+i}, 0" for i in range(32)]
    sl_ += ["v_lshrrev_b32 v120, 9, v1", "v_and_b32 v123, 0xf0, v1", "v_lshl_add_u32 v123, v120, 8, v123",
            "v_and_b32 v120, 0x100, v1", "v_cmp_ne_u32 vcc, 0, v120", f"v_mov_b32 v120, {sONE}",
            f"s_mov_b32 {T[4]}, {sKV}", f"s_mov_b32 {T[5]}, 64",
            "SLOW2:", f"buffer_load_dwordx4 {vr(KF[0],4)}, {vL}, {WS}, {T[4]} offen sc1",
            f"buffer_load_dwordx4 {vr(VL[0],4)}, v123, {WS}, {T[4]} offen offset:1024 sc1",
            f"buffer_load_dwordx4 {vr(VH[0],4)}, v123, {WS}, {T[4]} offen offset:1536 sc1", "s_waitcnt vmcnt(0)", QK(0), QK(1)]
    sl_ += [f"v_cndmask_b32 v{b+i}, v{b+i}, v120, vcc" for b in (VL[0], VH[0]) for i in range(4)]
    for h in range(2):
        sl_ += [f"v_sub_f32 v{S[h]+i}, v{S[h]+i}, v{121+h}" for i in range(16)]
        sl_ += [f"v_exp_f32 v{S[h]+i}, v{S[h]+i}" for i in range(16)]
    sl_ += [PV(0, 0), PV(0, 1), PV(1, 0), PV(1, 1), "s_nop 7", "s_nop 7",
            f"s_add_u32 {T[4]}, {T[4]}, 2048", f"s_sub_u32 {T[5]}, {T[5]}, 1", f"s_cmp_lg_u32 {T[5]}, 0", "s_cbranch_scc1 SLOW2",
            "s_branch SLOWD"]
    P.out_of_line(sl_)

    for i in range(8):
        E(f"v_lshlrev_b32 v{32+2*i}, 16, v{RES+i}", f"v_and_b32 v{33+2*i}, {sHI}, v{RES+i}")
    E("WAIT vm=2", "v_add_f32 v28, v28, v29", "v_add_f32 v30, v30, v31", "v_lshlrev_b32 v127, 16, v127", "v_add_f32 v28, v28, v30",
      f"s_lshl_b32 {T[4]}, {sW}, 8", f"s_add_u32 {T[4]}, {T[4]}, {L_TB}",
      "v_bfe_u32 v29, v1, 6, 3", f"v_lshl_add_u32 v29, v29, 5, {T[4]}", "v_bfe_u32 v30, v1, 4, 2", "v_lshl_add_u32 v29, v30, 2, v29",
      "ds_write2_b32 v29, v28, v127 offset1:4")
    E(f"s_lshl_b32 {T[2]}, {sRB}, 6", f"s_add_u32 {T[2]}, {T[2]}, {sFL}", "v_bfe_u32 v121, v1, 2, 6",
      f"s_lshl_b32 {T[3]}, {sRB}, 4", f"s_add_u32 {T[3]}, {T[3]}, {sW}", f"s_lshl_b32 {T[3]}, {T[3]}, 11", f"s_add_u32 {T[3]}, {T[3]}, {sGR}",
      f"s_lshl_b32 {T[4]}, {sW}, 11", f"s_add_u32 {T[4]}, {T[4]}, {RING}",
      "v_and_b32 v122, 0xf0, v1", "v_bfe_u32 v123, v1, 8, 1", "v_lshl_add_u32 v122, v123, 3, v122",
      "v_lshrrev_b32 v123, 9, v1", "v_lshl_add_u32 v122, v123, 2, v122",
      "v_mov_b32 v88, 0", "v_mov_b32 v89, 0")
    publish(T[1], F_O)
    stamp()
    E(f"s_mov_b32 m0, {T[4]}")
    poll("v121", T[2], F_O)
    for s in range(4):
        if s:
            E(f"s_add_u32 m0, {T[4]}, {s*8192}", f"s_add_u32 {T[3]}, {T[3]}, 8192")
        E([f"buffer_load_dwordx4 {vL}, {WS}, {T[3]} offen offset:{k*1024} sc1 lds ;@o{s}" for k in range(2)])
    stamp()
    D = 4
    def rdo(ks):
        L = []
        if ks % 8 == 0:
            L += [f"WAIT vm=o{ks//8}" + (" lg=0" if ks == 0 else ""), "s_barrier"]
        L.append(f"ds_read_b128 {vr(48+4*(ks%8),4)}, {vK} offset:{ks*1024} ;@ob{ks}")
        return L
    for ks in range(D):
        E(rdo(ks))
    for ks in range(32):
        E(f"WAIT lg=ob{ks}", f"v_mfma_f32_32x32x16_bf16 v[32:47], {vr(R+4*ks,4)}, {vr(48+4*(ks%8),4)}, v[32:47]")
        if ks + D < 32:
            E(rdo(ks + D))
    E(f"s_add_u32 {T[0]}, {T[0]}, {G_X1}")
    E(f"s_lshr_b32 {T[5]}, {sC}, 4", f"s_lshl2_add_u32 {T[5]}, {T[5]}, {sW}",
      f"s_lshl_b32 {T[2]}, {T[5]}, 6", f"s_add_u32 {T[2]}, {T[2]}, {sFL}",
      f"s_lshl_b32 {T[3]}, {T[5]}, 15", f"s_add_u32 {T[3]}, {T[3]}, {sGR}", f"s_add_u32 {T[3]}, {T[3]}, {G_X1}",
      f"s_lshl_b32 {T[4]}, {T[5]}, 12", f"s_add_u32 {T[4]}, {T[4]}, {sGR}", f"s_add_u32 {T[4]}, {T[4]}, {G_ST}")
    for h in range(2):
        E([f"v_cvt_pk_bf16_f32 v{80+4*h+i}, v{32+8*h+2*i}, v{33+8*h+2*i}" for i in range(4)])
        E(f"buffer_store_dwordx4 {vr(80+4*h,4)}, {vL}, {WS}, {T[0]} offen offset:{h*1024}")
    for i in range(8):
        E(f"v_dot2c_f32_bf16 v88, {sONE}, v{80+i}", f"v_dot2c_f32_bf16 v89, v{80+i}, v{80+i}")
    E("v_permlane32_swap_b32 v88, v89", "v_add_f32 v88, v88, v89", f"buffer_store_dword v88, v122, {WS}, {T[6]} offen")

    AR = 88
    def a1(t, ks, slot):
        off = (t*16 + ks)*1024
        if off < 65536:
            return f"ds_read_b128 {vr(AR+4*slot,4)}, {vL} offset:{off} ;@a{t}_{ks}"
        return f"ds_read_b128 {vr(AR+4*slot,4)}, v124 offset:{off-65536} ;@a{t}_{ks}"
    E("v_add_u32 v124, 0x10000, v1",
      "v_lshrrev_b32 v123, 8, v1", "v_and_b32 v125, 0xf0, v1", "v_lshl_add_u32 v126, v123, 10, v125", "v_lshl_add_u32 v125, v123, 9, v125",
      f"v_lshlrev_b32 v123, 5, v123", f"v_add_u32 v123, {L_TB}, v123",
      f"s_and_b32 {T[7]}, {sC}, 15", f"s_lshl2_add_u32 {T[8]}, {T[7]}, {T[2]}",
      f"s_mul_i32 {T[7]}, {T[7]}, 7168", f"s_mul_i32 {T[5]}, {T[5]}, 114688", f"s_add_u32 {T[7]}, {T[7]}, {T[5]}",
      f"s_add_u32 {T[7]}, {T[7]}, {sGR}", f"s_add_u32 {T[7]}, {T[7]}, {G_H}",
      f"s_lshl2_add_u32 {T[9]}, {sCQ}, {sW}", f"s_lshl_b32 {T[9]}, {T[9]}, 15", f"s_add_u32 {T[9]}, {T[9]}, {WQF}",
      f"s_cmp_eq_u32 {sLAY}, 0", f"s_cselect_b32 {T[9]}, {T[9]}, 0x20000000")
    publish(T[1], F_X1)
    stamp()
    E([a1(t, 0, t) for t in range(4)])
    poll("v121", T[2], F_X1)
    E([f"buffer_load_dwordx4 {vr(12+4*i,4)}, v126, {WS}, {T[4]} offen offset:{i*256} sc1 ;@sts" for i in range(4)])
    for ks in range(16):
        if ks and ks % 2 == 0:
            E(f"s_add_u32 {T[3]}, {T[3]}, 4096")
        E([f"buffer_load_dwordx4 {vr(R+8*ks+4*u,4)}, v125, {WS}, {T[3]} offen offset:{(ks&1)*2048+u*256} sc1 ;@x{ks}" for u in range(2)])
    stamp()
    def acc(t, u):
        return 32 + 8*t + 4*u
    def m1(t, ks, u, slot):
        d = vr(acc(t, u), 4)
        return f"v_mfma_f32_16x16x32_bf16 {d}, {vr(AR+4*slot,4)}, {vr(R+8*ks+4*u,4)}, {'0' if ks == 0 else d}"
    st = []
    st += ["v_pk_add_f32 v[12:13], v[12:13], v[16:17]", "v_pk_add_f32 v[14:15], v[14:15], v[18:19]",
           "v_pk_add_f32 v[20:21], v[20:21], v[24:25]", "v_pk_add_f32 v[22:23], v[22:23], v[26:27]",
           "v_pk_add_f32 v[12:13], v[12:13], v[20:21]", "v_pk_add_f32 v[14:15], v[14:15], v[22:23]"]
    for sw in ("v_permlane32_swap_b32", "v_permlane16_swap_b32"):
        st += [f"v_mov_b32 v{16+i}, v{12+i}" for i in range(4)]
        st += [f"{sw} v{12+i}, v{16+i}" for i in range(4)]
        st += ["v_pk_add_f32 v[12:13], v[12:13], v[16:17]", "v_pk_add_f32 v[14:15], v[14:15], v[18:19]"]
    st += [f"v_mul_f32 v{12+i}, {f2u(1/512)}, v{12+i}" for i in range(4)]
    st += ["v_fma_f32 v13, -v12, v12, v13", "v_fma_f32 v15, -v14, v14, v15", "v_max_f32 v13, 0, v13", "v_max_f32 v15, 0, v15",
           f"v_add_f32 v13, {f2u(1e-5)}, v13", f"v_add_f32 v15, {f2u(1e-5)}, v15", "v_rsq_f32 v28, v13", "v_rsq_f32 v30, v15",
           "v_mul_f32 v29, -v12, v28", "v_mul_f32 v31, -v14, v30"]
    def gelu(t):
        L = [f"ds_read_b128 v[112:115], v123 offset:{t*128}", f"ds_read_b128 v[116:119], v123 offset:{t*128+16} ;@tb", "WAIT lg=tb"]
        pr = [(acc(t, u) + 2*k, 28 + 2*u, k, 12 + 4*u + 2*k) for u in range(2) for k in range(2)]
        L += [f"v_pk_fma_f32 {vr(a,2)}, {vr(a,2)}, {vr(s,2)}, {vr(116+2*k,2)} op_sel_hi:[1,0,1]" for a, s, k, x in pr]
        L += [f"v_pk_fma_f32 {vr(a,2)}, {vr(112+2*k,2)}, {vr(s,2)}, {vr(a,2)} op_sel:[0,1,0]" for a, s, k, x in pr]
        L += [f"v_pk_mul_f32 {vr(x,2)}, {vr(a,2)}, {vr(a,2)}" for a, s, k, x in pr]
        L += [f"v_pk_fma_f32 {vr(x,2)}, {vr(x,2)}, {sGC}, {sGC} op_sel:[0,0,1] op_sel_hi:[1,0,1]" for a, s, k, x in pr]
        L += [f"v_pk_mul_f32 {vr(x,2)}, {vr(x,2)}, {vr(a,2)}" for a, s, k, x in pr]
        L += [f"v_exp_f32 v{12+i}, v{12+i}" for i in range(8)]
        L += [f"v_pk_add_f32 {vr(x,2)}, {vr(x,2)}, 1.0 op_sel_hi:[1,0]" for a, s, k, x in pr]
        L += [f"v_rcp_f32 v{12+i}, v{12+i}" for i in range(8)]
        L += [f"v_pk_mul_f32 {vr(a,2)}, {vr(a,2)}, {vr(x,2)}" for a, s, k, x in pr]
        ob = 20 + 4*(t & 1)
        L += [f"v_cvt_pk_bf16_f32 v{ob+i}, v{acc(t,0)+2*i}, v{acc(t,0)+2*i+1}" for i in (0, 2, 1, 3)]
        L += ["s_nop 0", f"v_permlane16_swap_b32 v{ob}, v{ob+2}", f"v_permlane16_swap_b32 v{ob+1}, v{ob+3}"]
        if t == 4:
            L.append(f"s_add_u32 {T[7]}, {T[7]}, 4096")
        L.append(f"buffer_store_dwordx4 {vr(ob,4)}, {vL}, {WS}, {T[7]} offen offset:{(t&3)*1024}")
        return L
    fill = list(st)
    E("WAIT vm=sts")
    for ks in range(16):
        b = (ks & 1)*4
        nxt = [a1(t, ks+1, 4-b+t) for t in range(4)] if ks < 15 else [a1(4+t, 0, t) for t in range(3)]
        E(f"WAIT vm=x{ks} lg=0")
        for t in range(4):
            for u in range(2):
                E(m1(t, ks, u, b+t))
                if u == 0 and nxt:
                    E(nxt.pop(0))
                elif fill:
                    E(fill.pop(0))
                    if fill:
                        E(fill.pop(0))
    assert not fill
    fill = []
    for t in range(4):
        fill += gelu(t)
    per = -(-len(fill) // 90)
    for ks in range(16):
        b = (ks & 1)*3
        nxt = [a1(4+t, ks+1, 3-b+t) for t in range(3)] if ks < 15 else []
        wq = []
        if ks:
            k = 2*(ks-1)
            wq = [f"buffer_load_dwordx4 {vr(R+4*(k+i),4)}, {vL}, {WS}, {T[9]} offen offset:{((k+i)&3)*1024} sc1" for i in range(2)]
            if k % 4 == 2:
                wq[1] = [wq[1], f"s_add_u32 {T[9]}, {T[9]}, 4096"]
        E(f"WAIT lg=a6_{ks}")
        for t in range(3):
            for u in range(2):
                E(m1(4+t, ks, u, b+t))
                if u == 0 and nxt:
                    E(nxt.pop(0))
                if u == 1 and wq:
                    E(wq.pop(0))
                if ks or t:
                    for _ in range(per):
                        if fill:
                            E(fill.pop(0))
    E(fill)
    E([f"buffer_load_dwordx4 {vr(R+4*(30+i),4)}, {vL}, {WS}, {T[9]} offen offset:{(2+i)*1024} sc1" for i in range(2)])
    for t in range(4, 7):
        E(gelu(t))

    E(f"s_lshr_b32 {T[0]}, {sC}, 3", f"s_and_b32 {T[1]}, {sC}, 7", f"s_lshl2_add_u32 {T[1]}, {T[1]}, {sW}",
      f"s_lshl_b32 {T[2]}, {T[0]}, 7", f"s_add_u32 {T[2]}, {T[2]}, {sFL}",
      f"s_lshl_b32 {T[3]}, {sW}, 4", f"s_add_u32 {T[3]}, {T[3]}, {T[2]}",
      "v_bfe_u32 v121, v1, 6, 1", "v_bfe_u32 v122, v1, 2, 4", "v_lshl_add_u32 v121, v121, 6, v122",
      f"s_mul_i32 {T[4]}, {T[0]}, {2*114688}", f"s_mul_i32 {T[5]}, {sW}, 28672", f"s_add_u32 {T[4]}, {T[4]}, {T[5]}",
      f"s_add_u32 {T[4]}, {T[4]}, {sGR}", f"s_add_u32 {T[4]}, {T[4]}, {G_H}",
      f"s_lshl_b32 {T[5]}, {T[0]}, 16", f"s_lshl_b32 {T[6]}, {T[1]}, 10", f"s_add_u32 {T[5]}, {T[5]}, {T[6]}",
      f"s_add_u32 {T[5]}, {T[5]}, {sGR}", f"s_add_u32 {T[5]}, {T[5]}, {G_X1}", f"s_add_u32 {T[6]}, {T[5]}, 0x8000",
      f"s_lshl2_add_u32 {T[7]}, {sG}, {T[0]}", f"s_lshl_b32 {T[7]}, {T[7]}, 16", f"s_lshl_b32 {T[9]}, {T[1]}, 5",
      f"s_add_u32 {T[7]}, {T[7]}, {T[9]}",
      f"s_lshl2_add_u32 {T[1]}, {T[1]}, {T[2]}",
      f"v_bfe_u32 {vXB}, v1, 4, 5", "v_lshrrev_b32 v122, 9, v1", "v_lshlrev_b32 v122, 4, v122", f"v_lshl_add_u32 {vXB}, {vXB}, 10, v122",
      f"s_lshl_b32 {T[9]}, {sW}, 11", f"v_add_u32 v31, {T[9]}, v1")
    E([f"v_xor_b32 v{27+p}, {p*2048}, v31" for p in (1, 2, 3)])
    E([f"v_add_u32 v{28+p}, {RING}, v{28+p}" for p in range(4)])
    publish(T[8], F_H)
    stamp()
    E([f"v_accvgpr_read_b32 v{88+i}, a{AB2+i}" for i in range(4)])
    for i in range(4):
        E(f"v_lshlrev_b32 v{80+2*i}, 16, v{88+i}", f"v_and_b32 v{81+2*i}, {sHI}, v{88+i}")
    E([f"v_mov_b32 v{40+i}, 0" for i in range(8)], [f"v_mov_b32 v{72+i}, 0" for i in range(8)])
    poll("v121", T[3], F_H)
    E(f"buffer_load_dwordx4 v[88:91], {vL}, {WS}, {T[5]} offen sc1 ;@r0", f"buffer_load_dwordx4 v[92:95], {vL}, {WS}, {T[6]} offen sc1 ;@r1")
    LR = [96+4*i for i in range(8)] + [12+4*i for i in range(4)]
    NL = len(LR)
    def hl(n):
        u, ks = divmod(n, 28)
        L = []
        if n and ks % 4 == 0:
            L.append(f"s_add_u32 {T[4]}, {T[4]}, {4096 if ks else 114688-6*4096}")
        L.append(f"buffer_load_dwordx4 {vr(LR[n%NL],4)}, {vL}, {WS}, {T[4]} offen offset:{(ks&3)*1024} sc1 ;@h{n}")
        return L
    for n in range(NL):
        E(hl(n))
    stamp()
    def resid(u):
        L = []
        for i in range(4):
            L += [f"v_lshlrev_b32 v{32+32*u+2*i}, 16, v{88+4*u+i}", f"v_and_b32 v{33+32*u+2*i}, {sHI}, v{88+4*u+i}"]
        L += [f"v_pk_add_f32 {vr(32+32*u+2*i,2)}, {vr(32+32*u+2*i,2)}, {vr(80+2*i,2)}" for i in range(4)]
        return L
    def red_w(u):
        return [f"ds_write_b128 v{27+p}, {vr(32+32*u+8*p+4*k,4)} offset:{(p-1)*8192+k*1024}" for p in (1, 2, 3) for k in range(2)]
    def red_r(u):
        return [f"ds_read_b128 {vr(32+32*u+8*p+4*k,4)}, v31 offset:{(p-1)*8192+k*1024} ;@rr{p}" for p in (1, 2, 3) for k in range(2)]
    def red_f(u):
        b = 32 + 32*u; L = []
        for p in (1, 2, 3):
            L += [f"WAIT lg=rr{p}"] + [f"v_pk_add_f32 {vr(b+2*i,2)}, {vr(b+2*i,2)}, {vr(b+8*p+2*i,2)}" for i in range(4)]
        L += [f"v_cvt_pk_bf16_f32 v{b+i}, v{b+2*i}, v{b+2*i+1}" for i in range(4)]
        L.append(f"buffer_store_dwordx4 {vr(b,4)}, {vXB}, {OUT}, {T[7]} offen")
        if u == 0:
            L.append(f"s_add_u32 {T[7]}, {T[7]}, 0x8000")
        return L
    E("WAIT vm=r0", resid(0))
    ex = {n: [] for n in range(56)}
    r1 = resid(1)
    for i in range(3):
        ex[1+i] = r1[4*i:4*i+4]
    w = red_w(0)
    for i in range(6):
        ex[30+i] = [w[i]]
    ex[37] = ["WAIT lg=0", "s_barrier"]
    w = red_r(0)
    for i in range(3):
        ex[38+i] = w[2*i:2*i+2]
    w = red_f(0)
    for i in range(5):
        ex[42+i] = w[5*i:5*i+5]
    ex[50] = ["s_barrier"]
    for n in range(56):
        u, ks = divmod(n, 28)
        E(f"WAIT vm=h{n}")
        for ct in range(2):
            d = vr(32+32*u+16*ct, 16)
            E(f"v_mfma_f32_32x32x16_bf16 {d}, {ar((ks*2+ct)*4,4)}, {vr(LR[n%NL],4)}, {'0' if (ks == 0 and ct) else d}")
            if ct == 0:
                E(ex[n])
        if n + NL < 56:
            E(hl(n + NL))
    E(red_w(1), "WAIT lg=0", "s_barrier", red_r(1), red_f(1))
    E(f"s_cmp_lg_u32 {sLAY}, 0", "s_cbranch_scc1 FINAL")
    E("v_bfe_u32 v126, v1, 2, 7", f"s_mov_b32 {T[5]}, {T[1]}", f"s_mov_b32 {T[6]}, {T[2]}",
      f"s_add_u32 {sKV}, {sKV}, 0x20000", f"s_add_u32 {sKVF}, {sKVF}, 1024")
    x_dma_setup()
    publish(T[5], F_X2)
    stamp()
    p1_addr()
    poll("v126", T[6], F_X2)
    x_dma(OUT, " sc1")
    E(f"s_mov_b32 {sLAY}, 1", f"s_add_u32 {sGR}, {sGR}, {8<<21}", f"s_add_u32 {sFL}, {sFL}, {8*2048}",
      "s_mov_b32 s12, s52", "s_mov_b32 s13, s53")
    p1(False)
    E("s_branch LAYER")
    E("FINAL:")
    if o.get("diag_delay"):
        if o.get("diag_safe"):
            E(f"s_cmp_eq_u32 {sSAFE}, 0", "s_cbranch_scc1 DLYD")
        E("s_memtime s[92:93]", "s_waitcnt lgkmcnt(0)", "s_mov_b32 s70, s92", "DLY:", "s_memtime s[92:93]", "s_waitcnt lgkmcnt(0)",
          "s_sub_u32 s71, s92, s70", f"s_cmp_lt_u32 s71, {o['diag_delay']}", "s_cbranch_scc1 DLY", "DLYD:")
    if o.get("diag_wb"):
        E("s_waitcnt vmcnt(0)", "buffer_wbl2 sc0 sc1", "s_waitcnt vmcnt(0)")
    if o.get("diag_rt"):
        stamp()
    if o["debug"]:
        E("s_waitcnt vmcnt(0)")
        stamp()
        E("s_memrealtime s[92:93]", "s_waitcnt lgkmcnt(0)", "v_writelane_b32 v0, s92, 1",
          f"s_lshl2_add_u32 {T[0]}, s2, {sW}", f"s_lshl_b32 {T[0]}, {T[0]}, 8", f"s_add_u32 {T[0]}, {T[0]}, {DBG}",
          f"v_writelane_b32 v0, {sBUD}, 62", f"v_writelane_b32 v0, {sSAFE}, 63",
          "v_lshrrev_b32 v2, 2, v1", f"buffer_store_dword v0, v2, {WS}, {T[0]} offen")
    E(f"s_or_b32 {T[0]}, s2, {sW}", f"s_cmp_lg_u32 {T[0]}, 0", "s_cbranch_scc1 KEXIT",
      "s_mov_b64 exec, 1", f"buffer_store_dword {vF}, off, {WS}, 0 sc1")
    E("KEXIT:", "s_endpgm")
    P.flush_ool()
    E("KEND:")
    body = P.finish()
    ref = open(f"cdna_kernels/{NAME}.s.ref").read().split("\n")
    head = []
    for l in ref:
        if l.startswith("; @launch"):
            l = f"; @launch grid=(256,1,1) block=(256,1,1) lds={LDS_BYTES}"
        head.append(l)
        if l.startswith(NAME + "_kernel:"):
            break
    tail = f""".section .rodata,"a"
.p2align 6
.amdhsa_kernel {NAME}_kernel
  .amdhsa_next_free_vgpr 512
  .amdhsa_next_free_sgpr 102
  .amdhsa_accum_offset 256
  .amdhsa_group_segment_fixed_size 0
  .amdhsa_kernarg_size 104
  .amdhsa_user_sgpr_count 2
  .amdhsa_user_sgpr_kernarg_segment_ptr 1
  .amdhsa_system_sgpr_workgroup_id_x 1
.end_amdhsa_kernel
"""
    return "\n".join(head) + "\n" + body + tail, P


if __name__ == "__main__":
    kw = {}
    out = f"cdna_kernels/{NAME}.s"
    for a in sys.argv[1:]:
        k, v = a.split("=")
        if k == "out":
            out = v
        else:
            kw[k] = int(v)
    s, P = gen(**kw)
    open(out, "w").write(s)
    print("lines", len(P.I), "auto-pad states", P.padded)
```
